```python
import torch

def _softmax(x, axis=-1):
    return torch.softmax(x, dim=axis)

def _gelu(x):
    return torch.nn.functional.gelu(x, approximate='tanh')

def _silu(x):
    return torch.nn.functional.silu(x)

def _sigmoid(x):
    return torch.sigmoid(x)

def _layernorm(x, axis=-1, eps=1e-05):
    m = x.mean(dim=axis, keepdim=True)
    v = x.var(dim=axis, keepdim=True, unbiased=False)
    return (x - m) / torch.sqrt(v + eps)

def _scatter_add(tgt, idx, src, axis=0):
    return tgt.clone().index_add_(axis, idx, src)

def _segment_sum(src, seg, n):
    out = torch.zeros((n,) + src.shape[1:], dtype=src.dtype)
    return out.index_add_(0, seg, src)

def _pad(x, pw):
    flat = tuple((v for pair in reversed(pw) for v in pair))
    return torch.nn.functional.pad(x, flat)
kernel_name = 'recurrent_scan__memory_aug_recurrent_mem_tr__dense_activation_gelu__prompt'

def setup_inputs():

    _w = lambda a: (lambda t: t.to(torch.bfloat16) if t.is_floating_point() else t)(torch.as_tensor(a))

    def _A_setup():
        B, S, Dm = (1, 2048, 1024)
        H, Dh = (32, 128)
        M, seg = (8, 32)
        seg = min(seg, S)
        S = S // seg * seg
        return {'x': _w((lambda *s: torch.randn(*s, dtype=torch.bfloat16) * 0.1)(B, S, Dm)), 'mem0': _w((lambda *s: torch.randn(*s, dtype=torch.bfloat16) * 1.6)(B, M, Dm)), 'Wq': _w((lambda *s: torch.randn(*s, dtype=torch.bfloat16) * 0.8)(Dm, H, Dh) * Dm ** (-0.5)), 'Wk': _w((lambda *s: torch.randn(*s, dtype=torch.bfloat16) * 0.8)(Dm, H, Dh) * Dm ** (-0.5)), 'Wv': _w((lambda *s: torch.randn(*s, dtype=torch.bfloat16) * 1.6)(Dm, H, Dh) * Dm ** (-0.5)), 'Wo': _w((lambda *s: torch.randn(*s, dtype=torch.bfloat16) * 1.6)(H, Dh, Dm) * (H * Dh) ** (-0.5)), 'seg_len': seg}
    _A_in = _A_setup()

    def _B_setup():
        B, S, D, F = (1, 2048, 1024, 3584)
        return {'x': _w((lambda *s: torch.randn(*s, dtype=torch.bfloat16) * 0.1)(B, S, D)), 'w1': _w((lambda *s: torch.randn(*s, dtype=torch.bfloat16) * 0.4)(D, F) * D ** (-0.5)), 'b1': _w((lambda *s: torch.randn(*s, dtype=torch.bfloat16) * 0.4)(F) * 0.01), 'w2': _w((lambda *s: torch.randn(*s, dtype=torch.bfloat16) * 0.4)(F, D) * F ** (-0.5)), 'b2': _w((lambda *s: torch.randn(*s, dtype=torch.bfloat16) * 0.4)(D) * 0.01)}
    _B_in = _B_setup()
    return {'A_x': _A_in['x'], 'A_mem0': _A_in['mem0'], 'A_Wq': _A_in['Wq'], 'A_Wk': _A_in['Wk'], 'A_Wv': _A_in['Wv'], 'A_Wo': _A_in['Wo'], 'A_seg_len': _A_in['seg_len'], 'B_x': _B_in['x'], 'B_w1': _B_in['w1'], 'B_b1': _B_in['b1'], 'B_w2': _B_in['w2'], 'B_b2': _B_in['b2']}

def reference(A_x, A_mem0, A_Wq, A_Wk, A_Wv, A_Wo, A_seg_len, B_x, B_w1, B_b1, B_w2, B_b2):

    def _A_ref(x, mem0, Wq, Wk, Wv, Wo, seg_len):
        B, S, Dm = x.shape
        H, Dh = (Wq.shape[1], Wq.shape[2])
        M = mem0.shape[1]
        scale = Dh ** (-0.5)
        n_seg = S // seg_len
        L = M + seg_len
        idx = torch.arange(L)
        mask = (idx[:, None] < M) | (idx[:, None] >= idx[None, :])
        mem = mem0
        outs = []
        for s in range(n_seg):
            xs = x[:, s * seg_len:(s + 1) * seg_len, :].clone()
            h = torch.concatenate([mem, xs], axis=1)
            q = torch.einsum('btd,dhe->bhte', h, Wq)
            k = torch.einsum('btd,dhe->bhte', h, Wk)
            v = torch.einsum('btd,dhe->bhte', h, Wv)
            scores = torch.einsum('bhqe,bhke->bhqk', q, k) * scale
            scores = torch.where(mask[None, None], scores, -1000000000.0)
            p = _softmax(scores, axis=-1)
            o = torch.einsum('bhqk,bhke->bhqe', p, v)
            o = torch.einsum('bhte,hed->btd', o, Wo)
            mem = o[:, :M, :].clone()
            outs.append(o[:, M:, :])
        return torch.concatenate(outs, axis=1)

    def _B_ref(x, w1, b1, w2, b2):
        h = torch.einsum('bsd,df->bsf', x, w1) + b1
        h = _gelu(h)
        return torch.einsum('bsf,fd->bsd', h, w2) + b2
    x = A_x
    xn = _layernorm(x, axis=-1)
    s = _A_ref(xn, A_mem0, A_Wq, A_Wk, A_Wv, A_Wo, A_seg_len)
    g = _silu(_B_ref(xn, B_w1, B_b1, B_w2, B_b2))
    return x + s * g
```

```python
class Asm:
    def __init__(self):
        self.lines = []
        self._uid = 0
    def __call__(self, s=""):
        for ln in s.split("\n"):
            self.lines.append("    " + ln.strip() if ln.strip() and not ln.strip().endswith(":") else ln.strip())
    def label(self, name):
        self.lines.append(name + ":")
    def comment(self, s):
        self.lines.append("    ; " + s)
    def uid(self, p="L"):
        self._uid += 1
        return f"{p}_{self._uid}"
    def text(self):
        return "\n".join(self.lines) + "\n"

def vr(b, n=1):
    return f"v{b}" if n == 1 else f"v[{b}:{b+n-1}]"
def ar(b, n=1):
    return f"a{b}" if n == 1 else f"a[{b}:{b+n-1}]"
def sr(b, n=1):
    return f"s{b}" if n == 1 else f"s[{b}:{b+n-1}]"

def kernel_header(a, name):
    a.lines.append(".text")
    a.lines.append(f".globl {name}")
    a.lines.append(".p2align 8")
    a.lines.append(f".type {name},@function")
    a.lines.append(f"{name}:")

def kernel_desc(a, name, vgpr, accum, sgpr=102):
    a.lines.append('.section .rodata,"a"')
    a.lines.append(".p2align 6")
    a.lines.append(f".amdhsa_kernel {name}")
    a.lines.append(f"  .amdhsa_next_free_vgpr {vgpr}")
    a.lines.append(f"  .amdhsa_next_free_sgpr {sgpr}")
    a.lines.append(f"  .amdhsa_accum_offset {accum}")
    a.lines.append("  .amdhsa_group_segment_fixed_size 0")
    a.lines.append("  .amdhsa_kernarg_size 120")
    a.lines.append("  .amdhsa_user_sgpr_count 2")
    a.lines.append("  .amdhsa_user_sgpr_kernarg_segment_ptr 1")
    a.lines.append("  .amdhsa_system_sgpr_workgroup_id_x 1")
    a.lines.append("  .amdhsa_float_denorm_mode_32 3")
    a.lines.append(".end_amdhsa_kernel")

def srd(a, d, base, nbytes, off_s=None, off_imm=None):
    if off_imm is not None and off_imm != 0:
        a(f"s_add_u32 s{d}, s{base}, {off_imm:#x}")
        a(f"s_addc_u32 s{d+1}, s{base+1}, 0")
    elif off_s is not None:
        a(f"s_add_u32 s{d}, s{base}, s{off_s}")
        a(f"s_addc_u32 s{d+1}, s{base+1}, 0")
    else:
        a(f"s_mov_b32 s{d}, s{base}")
        a(f"s_mov_b32 s{d+1}, s{base+1}")
    a(f"s_mov_b32 s{d+2}, {nbytes:#x}")
    a(f"s_mov_b32 s{d+3}, 0x00020000")
```

```python
from asmlib import *
from layout import *
import struct, math

S_RING, S_KX, S_KM, S_W = 8, 12, 16, 20
S_STEP, S_X, S_J, S_WV = 24, 25, 26, 27
S_SL0, S_SL1, S_SL2, S_SL3 = 28, 29, 30, 31
S_SPIN = 32
S_KXO = 33
S_KMO = 34
S_CS = 35
S_T = 36
S_ST = 40
OOB = 0x40000000
SPIN_MAX = 1 << 15
XB, VB, WB = 0, 12288, 16384
CH_LDS = 131072

class CR:
    def __init__(s):
        v = 1
        def al(n, al=1):
            nonlocal v
            v = (v + al - 1) // al * al
            b = v; v += n
            return b
        s.L = al(1); s.T = al(6); s.IDX = al(1)
        for n in "MEMLD OLD XR VW VR WW WR SST SST0 SLD SLD0 OST PST PL1 PL2 PL3 MST KXA VXA KMA PZ0 PZ1 PZ2".split():
            setattr(s, n, al(1))
        s.A = al(16, 4)
        s.Q = al(24, 4)
        s.WO = al(8, 4)
        s.KXF = al(8, 4); s.VXF = al(8, 4)
        s.R = al(32, 4)
        s.X = al(4, 4)
        s.S = al(12, 4)
        s.PS = al(24, 4)
        s.VM = al(8, 4)
        s.BM = al(4, 4)
        s.BX = al(4, 4)
        s.O = al(8, 4)
        s.NEG = al(4, 4)
        s.end = v

def wreg(t, i):
    return ar((t * 4 + i) * 8, 8)

def chain_setup(a, r, pol):
    L, T = r.L, r.T
    a(f"v_and_b32 v{L}, 63, v0")
    a(f"v_lshrrev_b32 v{T}, 6, v0")
    a(f"v_readfirstlane_b32 s{S_WV}, v{T}")
    srd(a, S_RING, 4, RING_BYTES, off_imm=RING)
    srd(a, S_KX, 4, VX - KX + 0x1000000, off_imm=KX)
    srd(a, S_KM, 4, VM - KM + 0x400000, off_imm=KM)
    n, g, hf5, b4, n7 = T + 1, T + 2, T + 3, T + 4, T + 5
    a(f"v_and_b32 v{n}, 15, v{L}")
    a(f"v_lshrrev_b32 v{g}, 4, v{L}")
    a(f"v_lshrrev_b32 v{hf5}, 5, v{L}")
    a(f"v_and_b32 v{b4}, 1, v{g}")
    a(f"v_and_b32 v{n7}, 7, v{L}")
    t0, t1, t2, t3 = S_T, S_T + 1, S_T + 2, S_T + 3
    a(f"v_mov_b32 v{r.IDX}, 0x4444")
    a(f"v_mov_b32 v{T}, 0xeeee")
    a(f"v_and_b32 v{r.XR}, 2, v{L}")
    a(f"v_cmp_ne_u32 vcc, 0, v{r.XR}")
    a(f"v_cndmask_b32 v{r.IDX}, v{r.IDX}, v{T}, vcc")
    a(f"v_lshlrev_b32 v{T}, 4, v{L}")
    a(f"v_and_b32 v{r.XR}, 1, v{L}")
    a(f"s_lshl_b32 s{t0}, s{S_X}, 14")
    a(f"s_lshl_b32 s{t1}, s{S_WV}, 12")
    a(f"s_add_u32 s{t1}, s{t1}, s{t0}")
    a(f"s_add_u32 s{t1}, s{t1}, {R_MEM}")
    a(f"v_add_u32 v{r.MEMLD}, s{t1}, v{T}")
    a(f"v_add_u32 v{r.OLD}, {R_O - R_MEM}, v{r.MEMLD}")
    a(f"v_mul_u32_u24 v{r.XR}, 288, v{r.XR}")
    a(f"v_lshl_add_u32 v{r.XR}, v{b4}, 4, v{r.XR}")
    a(f"v_bfe_u32 v{T}, v{L}, 1, 2")
    a(f"v_lshl_add_u32 v{r.XR}, v{T}, 6, v{r.XR}")
    a(f"v_bfe_u32 v{T}, v{L}, 3, 1")
    a(f"v_lshl_add_u32 v{T}, v{hf5}, 1, v{T}")
    a(f"v_mul_u32_u24 v{T}, 768, v{T}")
    a(f"v_add_u32 v{r.XR}, v{r.XR}, v{T}")
    if XB: a(f"v_add_u32 v{r.XR}, {XB}, v{r.XR}")
    a(f"s_lshl_b32 s{t1}, s{S_WV}, 10")
    a(f"s_add_u32 s{t2}, s{t1}, {VB}")
    a(f"v_lshl_add_u32 v{r.VW}, v{L}, 3, s{t2}")
    a(f"s_add_u32 s{t2}, s{t1}, {WB}")
    a(f"v_lshl_add_u32 v{r.WW}, v{L}, 4, s{t2}")
    a(f"v_lshlrev_b32 v{r.WR}, 4, v{L}")
    a(f"v_add_u32 v{r.WR}, {WB}, v{r.WR}")
    a(f"v_lshlrev_b32 v{r.VR}, 3, v{L}")
    a(f"v_lshl_add_u32 v{T}, v{hf5}, 5, v{n}")
    a(f"v_lshlrev_b32 v{T}, 3, v{T}")
    a(f"v_lshl_add_u32 v{T}, v{b4}, 9, v{T}")
    a(f"s_cmp_eq_u32 s{S_WV}, 1")
    a(f"s_cselect_b64 vcc, -1, 0")
    a(f"v_cndmask_b32 v{r.VR}, v{r.VR}, v{T}, vcc")
    a(f"v_add_u32 v{r.VR}, {VB}, v{r.VR}")
    a(f"s_lshr_b32 s{t0}, s{S_J}, 2")
    a(f"s_lshl_b32 s{t1}, s{S_X}, 3")
    a(f"s_add_u32 s{t0}, s{t0}, s{t1}")
    a(f"s_and_b32 s{t1}, s{S_J}, 3")
    a(f"s_mul_i32 s{t2}, s{t0}, {S_HS}")
    a(f"s_add_u32 s{t2}, s{t2}, {R_S}")
    a(f"s_mul_i32 s{t3}, s{t1}, 1280")
    a(f"s_add_u32 s{t3}, s{t3}, s{t2}")
    a(f"v_lshl_add_u32 v{T}, v{g}, 3, v{n7}")
    a(f"v_lshlrev_b32 v{T}, 4, v{T}")
    a(f"v_mov_b32 v{r.PZ0}, {OOB:#x}")
    a(f"v_add_u32 v{r.SST}, s{t3}, v{T}")
    a(f"v_cmp_gt_u32 vcc, 8, v{n}")
    a(f"v_cndmask_b32 v{r.SST}, v{r.PZ0}, v{r.SST}, vcc")
    a(f"v_add_u32 v{r.SST0}, {1024 - 256}, v{r.SST}")
    a(f"v_cmp_lt_u32 vcc, 1, v{g}")
    a(f"v_cndmask_b32 v{r.SST0}, v{r.PZ0}, v{r.SST0}, vcc")
    a(f"v_bfe_u32 v{r.SLD0}, v{L}, 3, 1")
    a(f"v_lshl_add_u32 v{r.SLD}, v{r.SLD0}, 9, v{T}")
    a(f"v_add_u32 v{r.SLD}, s{t2}, v{r.SLD}")
    a(f"v_lshl_add_u32 v{r.SLD0}, v{b4}, 1, v{r.SLD0}")
    a(f"v_lshlrev_b32 v{r.SLD0}, 2, v{r.SLD0}")
    a(f"v_lshl_add_u32 v{r.SLD0}, v{hf5}, 7, v{r.SLD0}")
    a(f"v_lshl_add_u32 v{r.SLD0}, v{n7}, 4, v{r.SLD0}")
    a(f"s_add_u32 s{t2}, s{t2}, 1024")
    a(f"v_add_u32 v{r.SLD0}, s{t2}, v{r.SLD0}")
    a(f"s_lshl_b32 s{t2}, s{S_X}, 14")
    a(f"s_lshl_b32 s{t1}, s{S_J}, 9")
    a(f"s_add_u32 s{t2}, s{t2}, s{t1}")
    a(f"v_lshlrev_b32 v{r.OST}, 8, v{hf5}")
    a(f"v_lshl_add_u32 v{r.OST}, v{b4}, 5, v{r.OST}")
    a(f"v_bfe_u32 v{r.MST}, v{L}, 1, 2")
    a(f"v_lshl_add_u32 v{r.OST}, v{r.MST}, 6, v{r.OST}")
    a(f"v_and_b32 v{r.MST}, 1, v{L}")
    a(f"v_lshl_add_u32 v{r.OST}, v{r.MST}, 4, v{r.OST}")
    a(f"v_add_u32 v{r.OST}, s{t2}, v{r.OST}")
    a(f"v_add_u32 v{r.OST}, {R_O}, v{r.OST}")
    a(f"v_cmp_gt_u32 vcc, 8, v{n}")
    a(f"v_cndmask_b32 v{r.OST}, v{r.PZ0}, v{r.OST}, vcc")
    a(f"v_bfe_u32 v{r.MST}, v{L}, 3, 1")
    a(f"v_lshlrev_b32 v{r.MST}, 8, v{r.MST}")
    a(f"v_lshl_add_u32 v{r.MST}, v{g}, 6, v{r.MST}")
    a(f"v_bfe_u32 v{r.KMA}, v{L}, 2, 1")
    a(f"v_lshl_add_u32 v{r.MST}, v{r.KMA}, 5, v{r.MST}")
    a(f"v_and_b32 v{r.KMA}, 3, v{L}")
    a(f"v_lshl_add_u32 v{r.MST}, v{r.KMA}, 2, v{r.MST}")
    a(f"v_add_u32 v{r.MST}, s{t2}, v{r.MST}")
    a(f"v_add_u32 v{r.MST}, {R_MEM}, v{r.MST}")
    a(f"s_cmp_eq_u32 s{S_WV}, 1")
    a(f"s_cselect_b32 s{t1}, {R_O - R_MEM}, 0")
    a(f"s_add_u32 s{t1}, s{t1}, {R_MEM}")
    a(f"s_add_u32 s{t1}, s{t1}, s{t2}")
    a(f"v_lshl_add_u32 v{r.PZ2}, v{L}, 4, s{t1}")
    a(f"v_cmp_gt_u32 vcc, 32, v{L}")
    a(f"v_cndmask_b32 v{r.PZ2}, v{r.PZ0}, v{r.PZ2}, vcc")
    a(f"s_add_u32 s{t1}, s{t3}, 1024")
    a(f"v_lshl_add_u32 v{r.PZ1}, v{L}, 4, s{t1}")
    a(f"v_cmp_gt_u32 vcc, 16, v{L}")
    a(f"v_cndmask_b32 v{r.PZ1}, v{r.PZ0}, v{r.PZ1}, vcc")
    a(f"s_lshl_b32 s{t0}, s{S_X}, 5")
    a(f"s_add_u32 s{t0}, s{t0}, s{S_J}")
    a(f"s_lshl_b32 s{t1}, s{t0}, 9")
    a(f"v_add_u32 v{r.KMA}, s{t1}, v{T}")
    a(f"v_cmp_lt_u32 vcc, 7, v{n}")
    a(f"v_cndmask_b32 v{r.KMA}, v{r.PZ0}, v{r.KMA}, vcc")
    a(f"s_add_u32 s{t1}, s{t1}, {VM - KM}")
    a(f"v_lshl_add_u32 v{T}, v{L}, 3, s{t1}")
    a(f"s_cmp_eq_u32 s{S_WV}, 1")
    a(f"s_cselect_b64 vcc, -1, 0")
    a(f"v_cndmask_b32 v{r.KMA}, v{r.KMA}, v{T}, vcc")
    a(f"s_lshr_b32 s{t1}, s{S_J}, 1")
    a(f"s_lshl_b32 s{t1}, s{t1}, 14")
    a(f"s_and_b32 s{t2}, s{S_J}, 1")
    a(f"s_lshl_b32 s{t2}, s{t2}, 12")
    a(f"s_add_u32 s{t1}, s{t1}, s{t2}")
    a(f"s_add_u32 s{t1}, s{t1}, s{pol}")
    if R_PART: a(f"s_add_u32 s{t1}, s{t1}, {R_PART}")
    a(f"s_lshl_b32 s{t2}, s{S_X}, 10")
    a(f"s_add_u32 s{t1}, s{t1}, s{t2}")
    a(f"v_lshl_add_u32 v{r.PST}, v{L}, 4, s{t1}")
    a(f"v_xor_b32 v{r.PL1}, 1024, v{r.PST}")
    a(f"v_xor_b32 v{r.PL2}, 2048, v{r.PST}")
    a(f"v_xor_b32 v{r.PL3}, 3072, v{r.PST}")
    a(f"v_lshl_add_u32 v{T}, v{L}, 4, s{t3}")
    a(f"v_cndmask_b32 v{r.PZ0}, v{r.PST}, v{T}, vcc")
    a(f"s_lshl_b32 s{t1}, s{t0}, 11")
    a(f"v_lshlrev_b32 v{T}, 10, v{hf5}")
    a(f"v_lshl_add_u32 v{T}, v{b4}, 9, v{T}")
    a(f"v_add_u32 v{T}, s{t1}, v{T}")
    a(f"v_lshl_add_u32 v{r.VXA}, v{n}, 4, v{T}")
    a(f"v_add_u32 v{r.VXA}, {VX - KX}, v{r.VXA}")
    a(f"v_and_b32 v{r.KXA}, 8, v{L}")
    a(f"v_lshl_add_u32 v{r.KXA}, v{r.KXA}, 1, v{n7}")
    a(f"v_lshl_add_u32 v{r.KXA}, v{r.KXA}, 4, v{T}")
    for i in range(4):
        a(f"v_mov_b32 v{r.NEG + i}, -1")
        a(f"v_mov_b32 v{r.BM + i}, 0")
    for i in range(8):
        a(f"v_mov_b32 v{r.VM + i}, 0")
    a(f"s_mov_b32 s{S_SPIN}, 0")
    cs = struct.unpack("<I", struct.pack("<f", 128 ** -0.5 * math.log2(math.e)))[0]
    a(f"s_mov_b32 s{S_CS}, {cs:#x}")

def chain_weights(a, r):
    L, T = r.L, r.T
    t0, t1, t2, t3 = S_T, S_T + 1, S_T + 2, S_T + 3
    VD, VDO, TR, TRO = r.R, r.R + 1, r.R + 2, r.R + 3
    a(f"s_load_dwordx4 s[44:47], s[0:1], {KA['Wq']}")
    a(f"s_load_dwordx4 s[48:51], s[0:1], {KA['Wv']}")
    a(f"v_lshrrev_b32 v{T}, 2, v{L}")
    a(f"v_and_b32 v{T+1}, 3, v{L}")
    a(f"v_lshlrev_b32 v{T+1}, 4, v{T+1}")
    a(f"s_lshl_b32 s{t0}, s{S_X}, 5")
    a(f"s_add_u32 s{t0}, s{t0}, s{S_J}")
    a(f"s_lshl_b32 s{t0}, s{t0}, 6")
    a(f"s_lshl_b32 s{t1}, s{S_WV}, 21")
    a(f"s_add_u32 s{t0}, s{t0}, s{t1}")
    a(f"v_lshl_add_u32 v{VD}, v{T}, 13, v{T+1}")
    a(f"v_add_u32 v{VD}, s{t0}, v{VD}")
    a(f"s_lshl_b32 s{t0}, s{S_X}, 21")
    a(f"s_lshl_b32 s{t1}, s{S_WV}, 19")
    a(f"s_add_u32 s{t0}, s{t0}, s{t1}")
    a(f"s_lshl_b32 s{t1}, s{S_J}, 6")
    a(f"s_add_u32 s{t0}, s{t0}, s{t1}")
    a(f"v_lshl_add_u32 v{VDO}, v{T}, 11, v{T+1}")
    a(f"v_add_u32 v{VDO}, s{t0}, v{VDO}")
    a(f"s_lshl_b32 s{t2}, s{S_WV}, 15")
    a(f"v_and_b32 v{T}, 3, v{L}")
    a(f"v_lshl_add_u32 v{T}, v{T}, 3, s{t2}")
    a(f"v_bfe_u32 v{T+4}, v{L}, 2, 1")
    a(f"v_bfe_u32 v{T+1}, v{L}, 3, 1")
    a(f"v_bfe_u32 v{T+2}, v{L}, 4, 1")
    a(f"v_lshrrev_b32 v{T+3}, 5, v{L}")
    a(f"v_lshl_add_u32 v{T}, v{T+1}, 8, v{T}")
    a(f"v_lshl_add_u32 v{T}, v{T+3}, 9, v{T}")
    a(f"v_lshl_add_u32 v{TR}, v{T+4}, 10, v{T}")
    a(f"v_lshl_add_u32 v{TR}, v{T+2}, 7, v{TR}")
    a(f"v_lshl_add_u32 v{TRO}, v{T+4}, 6, v{T}")
    a(f"v_lshl_add_u32 v{TRO}, v{T+2}, 10, v{TRO}")
    a("s_waitcnt lgkmcnt(0)")
    def dma(m):
        srd(a, S_W, 44 + 2 * m, 1024 * 8192)
        ld = 8192 if m < 3 else 2048
        a(f"s_add_u32 m0, s{t2}, {(m & 1) * 16384}")
        a(f"s_mov_b32 s{t3}, 0")
        for d in range(16):
            a(f"buffer_load_dwordx4 v{VD if m < 3 else VDO}, s[{S_W}:{S_W+3}], s{t3} offen lds")
            if d < 15:
                a(f"s_add_u32 m0, m0, 1024")
                a(f"s_add_u32 s{t3}, s{t3}, {16 * ld}")
    def trs(m):
        for tile in range(2):
            for i in range(4):
                for q in range(4):
                    off = (m & 1) * 16384 + (64 * i + 32 * (q >> 1) + (1 if m < 3 else 2) * (q & 1)) * 64 + tile * 32
                    b = ((2 * m + tile) * 4 + i) * 8 + 2 * q
                    a(f"ds_read_b64_tr_b16 a[{b}:{b+1}], v{TR if m < 3 else TRO} offset:{off}")
        a("s_waitcnt lgkmcnt(0)")
    dma(0); dma(1)
    a("s_waitcnt vmcnt(16)"); trs(0); dma(2)
    a("s_waitcnt vmcnt(16)"); trs(1); dma(3)
    a("s_waitcnt vmcnt(16)"); trs(2)
    a("s_waitcnt vmcnt(0)"); trs(3)
    a(f"s_mul_i32 m0, s{S_WV}, 3072")
    if XB: a(f"s_add_u32 m0, m0, {XB}")

def smf(a, r, acc, t, i):
    a(f"v_smfmac_f32_16x16x64_bf16 {vr(acc, 4)}, {vr(r.A + 4 * i, 4)}, {wreg(t, i)}, v{r.IDX}")

def pk(a, d, x, y):
    a(f"v_pk_add_f32 {vr(d, 2)}, {vr(x, 2)}, {vr(y, 2)}")

def maxchk(a, t, regs):
    a(f"v_max3_u32 v{t}, v{regs[0]}, v{regs[1]}, v{regs[2]}")
    k = 3
    while k < len(regs):
        if k + 1 < len(regs):
            a(f"v_max3_u32 v{t}, v{t}, v{regs[k]}, v{regs[k+1]}"); k += 2
        else:
            a(f"v_max_u32 v{t}, v{t}, v{regs[k]}"); k += 1
    a(f"v_cmp_eq_u32 vcc, -1, v{t}")

def spin_guard(a, giveup):
    a(f"s_add_u32 s{S_SPIN}, s{S_SPIN}, 1")
    a(f"s_cmp_ge_u32 s{S_SPIN}, {SPIN_MAX}")
    a(f"s_cbranch_scc1 {giveup}")

def gather(a, cold, r, vaddr, slot, work, policy):
    def ld(x, i):
        x(f"buffer_load_dwordx4 {vr(r.A + 4 * i, 4)}, v{vaddr}, s[{S_RING}:{S_RING+3}], s{slot} offen offset:{1024 * i} sc1")
    def chk(x, i):
        maxchk(x, r.T, [r.A + 4 * i + k for k in range(4)])
    K = [a.uid("Lk") for _ in range(4)]; R = [a.uid("Lr") for _ in range(4)]
    BODY, DONE = a.uid("Lbody"), a.uid("Ldone")
    for i in range(4): ld(a, i)
    a("s_waitcnt vmcnt(3)")
    chk(a, 0)
    a(f"s_cbranch_vccnz {R[0]}")
    for i in range(4):
        a.label(K[i])
        w = work(i, a)
        h = len(w) // 2
        if i < 3:
            for f in w[:h]: f()
            a(f"s_waitcnt vmcnt({2 - i})")
            chk(a, i + 1)
            for f in w[h:]: f()
            a(f"s_cbranch_vccnz {R[i + 1]}")
        else:
            for f in w: f()
        c = cold
        c.label(R[i])
        if policy == 'C':
            ld(c, i)
            c(f"s_mov_b32 s{S_T}, {(0xf << (i + 1)) & 0xf}")
            c(f"s_mov_b32 s{S_T + 1}, {1 << i}")
            c("s_waitcnt vmcnt(1)")
            c(f"s_branch {BODY}")
            continue
        spin_guard(c, K[i])
        if policy == 'A':
            for k in range(i, 4): ld(c, k)
            c(f"s_waitcnt vmcnt({3 - i})")
            chk(c, i)
            c(f"s_cbranch_vccnz {R[i]}")
        else:
            ld(c, i)
            c("s_waitcnt vmcnt(0)")
            chk(c, i)
            c(f"s_cbranch_vccnz {R[i]}")
            for k in range(i + 1, 4): ld(c, k)
        c(f"s_branch {K[i]}")
    if policy == 'C':
        a.label(DONE)
        c = cold
        c.label(BODY)
        for i in range(4):
            sk, bad = a.uid("Lsk"), a.uid("Lbad")
            c(f"s_bitcmp0_b32 s{S_T}, {i}")
            c(f"s_cbranch_scc1 {sk}")
            chk(c, i)
            c(f"s_cmp_lt_u32 s{S_SPIN}, {SPIN_MAX}")
            c(f"s_cselect_b64 s[{S_T + 2}:{S_T + 3}], vcc, 0")
            c(f"s_cmp_lg_u64 s[{S_T + 2}:{S_T + 3}], 0")
            c(f"s_cbranch_scc1 {bad}")
            for f in work(i, c): f()
            c(f"s_branch {sk}")
            c.label(bad)
            ld(c, i)
            c(f"s_bitset1_b32 s{S_T + 1}, {i}")
            c.label(sk)
        c(f"s_mov_b32 s{S_T}, s{S_T + 1}")
        c(f"s_mov_b32 s{S_T + 1}, 0")
        c(f"s_add_u32 s{S_SPIN}, s{S_SPIN}, 1")
        c(f"s_cmp_eq_u32 s{S_T}, 0")
        c(f"s_cbranch_scc1 {DONE}")
        c("s_waitcnt vmcnt(0)")
        c(f"s_branch {BODY}")

def chain_loop(a, r, name, fast, stamps=False, o={}):
    st = "" if fast else " sc1"
    RG = f"s[{S_RING}:{S_RING+3}]"
    T = r.T
    cold = Asm(); cold._uid = (1 << 20) + a._uid
    policy = o.get('policy', 'A')
    kst = "" if o.get('kplain') else " sc1"
    q0, q1, k0, k1, v0_, v1_ = [r.Q + 4 * i for i in range(6)]
    def stamp(k):
        if stamps: a(f"{'s_memrealtime' if o.get('rt') else 's_memtime'} s[{S_ST + 2*k}:{S_ST + 2*k + 1}]")
    def prefetch():
        a(f"buffer_load_dwordx4 {vr(r.KXF, 4)}, v{r.KXA}, s[{S_KX}:{S_KX+3}], s{S_KXO} offen")
        a(f"buffer_load_dwordx4 {vr(r.KXF + 4, 4)}, v{r.KXA}, s[{S_KX}:{S_KX+3}], s{S_KXO} offen offset:128")
        a(f"buffer_load_dwordx4 {vr(r.VXF, 4)}, v{r.VXA}, s[{S_KX}:{S_KX+3}], s{S_KXO} offen")
        a(f"buffer_load_dwordx4 {vr(r.VXF + 4, 4)}, v{r.VXA}, s[{S_KX}:{S_KX+3}], s{S_KXO} offen offset:256")
    def zero_all():
        for i in range(24): a(f"v_mov_b32 v{r.Q + i}, 0")
        for i in range(8): a(f"v_mov_b32 v{r.WO + i}, 0")
    def xreduce():
        for w in range(4):
            a(f"ds_read_b128 {vr(r.R + 8 * w, 4)}, v{r.XR} offset:{w * 3072}")
            a(f"ds_read_b128 {vr(r.R + 8 * w + 4, 4)}, v{r.XR} offset:{w * 3072 + 32}")
    def xsum():
        a("s_waitcnt lgkmcnt(4)")
        for k in range(0, 8, 2): pk(a, r.R + k, r.R + k, r.R + 8 + k)
        a("s_waitcnt lgkmcnt(0)")
        for k in range(0, 8, 2): pk(a, r.R + 16 + k, r.R + 16 + k, r.R + 24 + k)
        for k in range(0, 8, 2): pk(a, r.R + k, r.R + k, r.R + 16 + k)
        for k in range(4):
            a(f"v_cvt_pk_bf16_f32 v{r.X + k}, v{r.R + 2*k}, v{r.R + 2*k + 1}")
    def vrest():
        for i in (1, 2, 3):
            smf(a, r, v0_, 4, i); smf(a, r, v1_, 5, i)
    def vfold():
        pk(a, v0_, v0_, v0_ + 2); pk(a, v0_ + 2, v1_, v1_ + 2)
        a(f"ds_write2st64_b64 v{r.VW}, {vr(v0_, 2)}, {vr(v0_ + 2, 2)} offset0:0 offset1:1")
    def side1():
        a(f"buffer_store_dwordx2 {vr(r.X, 2)}, v{r.KMA}, s[{S_KM}:{S_KM+3}], s{S_KMO} offen{kst}")
        a(f"buffer_store_dwordx4 {vr(r.NEG, 4)}, v{r.PZ0}, {RG}, s{S_SL2} offen{st}")
        a(f"buffer_store_dwordx4 {vr(r.NEG, 4)}, v{r.PZ1}, {RG}, s{S_SL2} offen{st}")
        a(f"buffer_store_dwordx4 {vr(r.NEG, 4)}, v{r.PZ2}, {RG}, s{S_SL2} offen{st}")
    def side2():
        a(f"buffer_store_dwordx4 {vr(r.X, 4)}, v{r.KMA}, s[{S_KM}:{S_KM+3}], s{S_KMO} offen{kst}")
        a(f"buffer_store_dwordx4 {vr(r.NEG, 4)}, v{r.PZ0}, {RG}, s{S_SL2} offen sc1")
        a(f"buffer_store_dwordx4 {vr(r.NEG, 4)}, v{r.PZ2}, {RG}, s{S_SL3} offen{st}")
    a(f"s_mov_b32 s{S_STEP}, 0")
    a(f"s_mov_b32 s{S_KXO}, 0")
    a(f"s_mov_b32 s{S_KMO}, 0")
    for k, s in enumerate((S_SL0, S_SL1, S_SL2, S_SL3)):
        a(f"s_mov_b32 s{s}, {k * RSLOT}")
    zero_all()
    a(f"s_cmp_lg_u32 s{S_WV}, 0")
    a(f"s_cbranch_scc1 {name}_step")
    prefetch()
    a.label(f"{name}_step")
    stamp(0)
    gather(a, cold, r, r.MEMLD, S_SL0, lambda i, x: [lambda t=t: smf(x, r, r.Q + 4 * t, t, i) for t in range(4)], policy)
    stamp(1)
    smf(a, r, v0_, 4, 0); smf(a, r, v1_, 5, 0)
    for t, off in ((q0, 0), (q1, 1536), (k0, 768), (k1, 2304)):
        pk(a, t, t, t + 2)
        a(f"ds_write_addtid_b32 v{t} offset:{off}")
        a(f"ds_write_addtid_b32 v{t + 1} offset:{off + 288}")
    stamp(16)
    a(f"s_cmp_eq_u32 s{S_WV}, 0")
    a("s_waitcnt lgkmcnt(0)")
    stamp(17)
    a("s_barrier")
    a(f"s_cbranch_scc1 {name}_w0")
    stamp(2)
    vrest(); vfold()
    a("s_waitcnt lgkmcnt(0)")
    a("s_barrier")
    a(f"s_cmp_eq_u32 s{S_WV}, 2")
    a(f"s_cbranch_scc1 {name}_w2")
    a(f"s_cmp_eq_u32 s{S_WV}, 3")
    a(f"s_cbranch_scc1 {name}_b4")
    for w in range(4):
        a(f"ds_read2_b64 {vr(r.R + 4 * w, 4)}, v{r.VR} offset0:{w * 128} offset1:{w * 128 + 16}") if w < 2 else \
        a(f"ds_read2_b64 {vr(r.R + 4 * w, 4)}, v{T} offset0:{(w - 2) * 128} offset1:{(w - 2) * 128 + 16}")
        if w == 0: a(f"v_add_u32 v{T}, 2048, v{r.VR}")
    a("s_waitcnt lgkmcnt(0)")
    for k in (0, 2):
        pk(a, r.R + k, r.R + k, r.R + 4 + k); pk(a, r.R + 8 + k, r.R + 8 + k, r.R + 12 + k)
    for k in (0, 2): pk(a, r.R + k, r.R + k, r.R + 8 + k)
    a(f"v_cvt_pk_bf16_f32 v{r.X}, v{r.R}, v{r.R+1}")
    a(f"v_cvt_pk_bf16_f32 v{r.X+1}, v{r.R+2}, v{r.R+3}")
    a(f"s_cmp_lg_u32 s{S_STEP}, 63")
    a(f"s_cbranch_scc1 {name}_b4")
    side1()
    a(f"s_branch {name}_done")
    a.label(f"{name}_w2")
    xreduce(); xsum()
    a(f"s_cmp_lg_u32 s{S_STEP}, 63")
    a(f"s_cbranch_scc1 {name}_b4")
    side2()
    a(f"s_branch {name}_done")
    a.label(f"{name}_w0")
    stamp(2)
    xreduce(); vrest(); stamp(18); xsum(); stamp(19)
    a(f"v_mfma_f32_16x16x32_bf16 {vr(r.S, 4)}, {vr(r.KXF, 4)}, {vr(r.X, 4)}, 0")
    a(f"v_mfma_f32_16x16x32_bf16 {vr(r.S + 4, 4)}, {vr(r.KXF + 4, 4)}, {vr(r.X, 4)}, 0")
    a(f"v_mfma_f32_16x16x32_bf16 {vr(r.S + 8, 4)}, {vr(r.X, 4)}, {vr(r.X, 4)}, 0")
    a("s_nop 5")
    a(f"buffer_store_dwordx4 {vr(r.S, 4)}, v{r.SST}, {RG}, s{S_SL0} offen{st}")
    a(f"buffer_store_dwordx4 {vr(r.S + 4, 4)}, v{r.SST}, {RG}, s{S_SL0} offen offset:512{st}")
    a(f"buffer_store_dwordx4 {vr(r.S + 8, 4)}, v{r.SST0}, {RG}, s{S_SL0} offen{st}")
    stamp(3)
    vfold()
    a(f"s_cmp_eq_u32 s{S_STEP}, 63")
    a("s_waitcnt lgkmcnt(0)")
    a("s_barrier")
    a(f"s_cbranch_scc1 {name}_done")
    stamp(20)
    for w in range(1, 4):
        a(f"ds_read2st64_b64 {vr(r.R + 4 * w, 4)}, v{r.VR} offset0:{2 * w} offset1:{2 * w + 1}")
    P = r.PS
    lp, ok = a.uid("Lps"), a.uid("Lks")
    def sloads(x):
        for c in range(4):
            x(f"buffer_load_dwordx4 {vr(P + 4 * c, 4)}, v{r.SLD}, {RG}, s{S_SL0} offen offset:{1280 * c} sc1")
            x(f"buffer_load_dword v{P + 16 + c}, v{r.SLD0}, {RG}, s{S_SL0} offen offset:{1280 * c} sc1")
    if o.get('searly'): sloads(a)
    a("s_waitcnt lgkmcnt(0)")
    for k in (0, 2):
        pk(a, r.R + 4 + k, v0_ + k, r.R + 4 + k); pk(a, r.R + 8 + k, r.R + 8 + k, r.R + 12 + k)
    for k in (0, 2): pk(a, r.R + 4 + k, r.R + 4 + k, r.R + 8 + k)
    a(f"v_cvt_pk_bf16_f32 v{r.VM}, v{r.R + 4}, v{r.R + 5}")
    a(f"v_cvt_pk_bf16_f32 v{r.VM + 4}, v{r.R + 6}, v{r.R + 7}")
    stamp(21)
    if o.get('swait', False): a("s_waitcnt vmcnt(0)")
    stamp(4)
    if not o.get('searly'): sloads(a)
    a.label(lp)
    E = r.R
    a("s_waitcnt vmcnt(4)")
    pk(a, E, P, P + 4); pk(a, E + 2, P + 2, P + 6)
    a(f"v_add_f32 v{E + 4}, v{P + 16}, v{P + 17}")
    a("s_waitcnt vmcnt(0)")
    pk(a, E + 6, P + 8, P + 12); pk(a, E + 8, P + 10, P + 14)
    a(f"v_add_f32 v{E + 5}, v{P + 18}, v{P + 19}")
    pk(a, E, E, E + 6); pk(a, E + 2, E + 2, E + 8)
    a(f"v_add_f32 v{E + 4}, v{E + 4}, v{E + 5}")
    M = E + 10
    a(f"v_maximum3_f32 v{M}, v{E}, v{E+1}, v{E+2}")
    a(f"v_maximum3_f32 v{M}, v{M}, v{E+3}, v{E+4}")
    a(f"v_cmp_u_f32 vcc, v{M}, v{M}")
    a(f"v_max_f32_dpp v{M}, v{M}, v{M} row_ror:8 row_mask:0xf bank_mask:0xf")
    a(f"v_mov_b32 v{M+1}, v{M}")
    a(f"v_permlane16_swap_b32 v{M+1}, v{M}")
    a(f"v_max_f32 v{M}, v{M}, v{M+1}")
    a(f"v_mov_b32 v{M+1}, v{M}")
    rs = a.uid("Lrs")
    a(f"s_cbranch_vccnz {rs}")
    a.label(ok)
    cold.label(rs)
    maxchk(cold, T, [P + i for i in range(20)])
    cold(f"s_cbranch_vccz {ok}")
    spin_guard(cold, ok)
    sloads(cold)
    cold(f"s_branch {lp}")
    stamp(5)
    a(f"v_permlane32_swap_b32 v{M+1}, v{M}")
    a(f"v_max_f32 v{M}, v{M}, v{M+1}")
    a(f"v_mul_f32 v{M}, s{S_CS}, v{M}")
    for k in range(5):
        a(f"v_fma_f32 v{E + k}, v{E + k}, s{S_CS}, -v{M}")
    for k in range(5):
        a(f"v_exp_f32 v{E + k}, v{E + k}")
    a(f"v_cvt_pk_bf16_f32 v{r.BX}, v{E}, v{E+1}")
    a(f"v_cvt_pk_bf16_f32 v{r.BX+1}, v{E+2}, v{E+3}")
    a(f"v_mov_b32_dpp v{E+5}, v{E+4} row_ror:8 row_mask:0xf bank_mask:0xf")
    a(f"v_mov_b32_dpp v{r.BX+2}, v{r.BX} row_ror:8 row_mask:0xf bank_mask:0xf")
    a(f"v_mov_b32_dpp v{r.BX+3}, v{r.BX+1} row_ror:8 row_mask:0xf bank_mask:0xf")
    a(f"v_cvt_pk_bf16_f32 v{r.BM}, v{E+4}, v{E+5}")
    a(f"v_add_f32 v{M}, v{E}, v{E+1}")
    a(f"v_mfma_f32_16x16x32_bf16 {vr(r.O, 4)}, {vr(r.VXF, 4)}, {vr(r.BX, 4)}, 0")
    a(f"v_add_f32 v{M+1}, v{E+2}, v{E+3}")
    a(f"v_add_f32 v{M}, v{M}, v{E+4}")
    a(f"v_mfma_f32_16x16x32_bf16 {vr(r.O + 4, 4)}, {vr(r.VXF + 4, 4)}, {vr(r.BX, 4)}, 0")
    a(f"v_add_f32 v{M}, v{M}, v{M+1}")
    a(f"v_mfma_f32_16x16x32_bf16 {vr(r.O, 4)}, {vr(r.VM, 4)}, {vr(r.BM, 4)}, {vr(r.O, 4)}")
    a("s_nop 0")
    a(f"v_add_f32_dpp v{M}, v{M}, v{M} row_ror:8 row_mask:0xf bank_mask:0xf")
    a(f"v_mov_b32 v{M+1}, v{M}")
    a(f"v_mfma_f32_16x16x32_bf16 {vr(r.O + 4, 4)}, {vr(r.VM + 4, 4)}, {vr(r.BM, 4)}, {vr(r.O + 4, 4)}")
    a("s_nop 0")
    a(f"v_permlane16_swap_b32 v{M+1}, v{M}")
    a(f"v_add_f32 v{M}, v{M}, v{M+1}")
    a(f"v_mov_b32 v{M+1}, v{M}")
    a(f"v_permlane32_swap_b32 v{M+1}, v{M}")
    a(f"v_add_f32 v{M}, v{M}, v{M+1}")
    a(f"v_rcp_f32 v{M}, v{M}")
    for k in range(0, 8, 2):
        a(f"v_pk_mul_f32 {vr(r.O + k, 2)}, {vr(r.O + k, 2)}, {vr(M, 2)} op_sel_hi:[1,0]")
    for k in range(4):
        a(f"v_cvt_pk_bf16_f32 v{r.X + k}, v{r.O + 2*k}, v{r.O + 2*k + 1}")
    a(f"buffer_store_dwordx4 {vr(r.X, 4)}, v{r.OST}, {RG}, s{S_SL0} offen{st}")
    stamp(6)
    if o.get('owait', False): a("s_waitcnt vmcnt(0)")
    a.label(f"{name}_b4")
    a(f"s_cmp_eq_u32 s{S_STEP}, 63")
    a(f"s_cbranch_scc1 {name}_done")
    a("s_barrier")
    stamp(7)
    gather(a, cold, r, r.OLD, S_SL0, lambda i, x: [lambda t=t: smf(x, r, r.WO + 4 * t, 6 + t, i) for t in range(2)], policy)
    stamp(8)
    a(f"s_add_u32 s{S_KXO}, s{S_KXO}, 262144")
    a(f"s_cmp_eq_u32 s{S_WV}, 3")
    pk(a, r.WO, r.WO, r.WO + 2); pk(a, r.WO + 2, r.WO + 4, r.WO + 6)
    a(f"s_cbranch_scc1 {name}_w3")
    a(f"ds_write_b128 v{r.WW}, {vr(r.WO, 4)}")
    stamp(23)
    a("s_waitcnt lgkmcnt(0)")
    a("s_barrier")
    stamp(9)
    zero_all()
    a(f"s_cmp_eq_u32 s{S_WV}, 1")
    a("s_barrier")
    a(f"s_cbranch_scc1 {name}_w1b")
    a(f"s_cmp_eq_u32 s{S_WV}, 2")
    a(f"s_cbranch_scc1 {name}_w2b")
    prefetch()
    a(f"s_branch {name}_b5")
    a.label(f"{name}_w1b")
    side1()
    a(f"s_branch {name}_b5")
    a.label(f"{name}_w2b")
    side2()
    a(f"s_branch {name}_b5")
    a.label(f"{name}_w3")
    a("s_barrier")
    stamp(9)
    for w in range(3):
        a(f"ds_read_b128 {vr(r.R + 4 * w, 4)}, v{r.WR} offset:{w * 1024}")
    a("s_waitcnt lgkmcnt(1)")
    for k in (0, 2): pk(a, r.R + k, r.R + k, r.R + 4 + k)
    a("s_waitcnt lgkmcnt(0)")
    for k in (0, 2): pk(a, r.R + 8 + k, r.R + 8 + k, r.WO + k)
    for k in (0, 2): pk(a, r.R + k, r.R + k, r.R + 8 + k)
    a(f"buffer_store_dwordx4 {vr(r.R, 4)}, v{r.PST}, {RG}, s{S_SL0} offen sc1")
    stamp(10)
    a("s_barrier")
    def ploads(x, b):
        for c, v in enumerate((r.PL1, r.PL2, r.PL3)):
            x(f"buffer_load_dwordx4 {vr(b + 4 * c, 4)}, v{v}, {RG}, s{S_SL0} offen sc1")
    E = r.R + 4
    def psum(x, b, n_after):
        x(f"s_waitcnt vmcnt({n_after + 2})")
        pk(x, E, r.R, b); pk(x, E + 2, r.R + 2, b + 2)
        x(f"s_waitcnt vmcnt({n_after})")
        pk(x, E + 4, b + 4, b + 8); pk(x, E + 6, b + 6, b + 10)
        pk(x, E, E, E + 4); pk(x, E + 2, E + 2, E + 6)
        x(f"v_maximum3_f32 v{E + 8}, v{E}, v{E+1}, v{E+2}")
        x(f"v_cmp_u_f32 vcc, v{E + 8}, v{E+3}")
        x(f"v_cvt_pk_bf16_f32 v{r.X}, v{E}, v{E+2}")
        x(f"v_cvt_pk_bf16_f32 v{r.X+1}, v{E+1}, v{E+3}")
    ok = a.uid("Lkp")
    pp = o.get('pp', 1)
    if pp == 1:
        zero_all()
        if o.get('pwait', True): a("s_waitcnt vmcnt(0)")
        if o.get('pdelay'): a(f"s_sleep {o['pdelay']}")
        stamp(11)
        lp, rp = a.uid("Lpp"), a.uid("Lrp")
        ploads(a, P)
        a.label(lp)
        psum(a, P, 0)
        a(f"s_cbranch_vccnz {rp}")
        cold.label(rp)
        maxchk(cold, T, [P + i for i in range(12)])
        cold(f"s_cbranch_vccz {ok}")
        spin_guard(cold, ok)
        ploads(cold, P)
        cold(f"s_branch {lp}")
    else:
        if o.get('pdelay'): a(f"s_sleep {o['pdelay']}")
        stamp(11)
        ploads(a, P)
        zero_all()
        if o.get('pdelay2'): a(f"s_sleep {o['pdelay2']}")
        ploads(a, P + 12)
        la, lb, ra, rb = a.uid("Lpa"), a.uid("Lpb"), a.uid("Lra"), a.uid("Lrb")
        a.label(la)
        psum(a, P, 3)
        a(f"s_cbranch_vccnz {ra}")
        cold.label(ra)
        maxchk(cold, T, [P + i for i in range(12)])
        cold(f"s_cbranch_vccz {ok}")
        spin_guard(cold, ok)
        ploads(cold, P)
        psum(cold, P + 12, 3)
        cold(f"s_cbranch_vccz {ok}")
        maxchk(cold, T, [P + 12 + i for i in range(12)])
        cold(f"s_cbranch_vccz {ok}")
        ploads(cold, P + 12)
        cold(f"s_branch {la}")
    a.label(ok)
    a(f"buffer_store_dword v{r.X}, v{r.MST}, {RG}, s{S_SL1} offen{st}")
    a(f"buffer_store_dword v{r.X + 1}, v{r.MST}, {RG}, s{S_SL1} offen offset:16{st}")
    stamp(12)
    if o.get('mwait', False): a("s_waitcnt vmcnt(0)")
    a.label(f"{name}_b5")
    a(f"s_mov_b32 s{S_T}, s{S_SL0}")
    a(f"s_mov_b32 s{S_SL0}, s{S_SL1}")
    a(f"s_mov_b32 s{S_SL1}, s{S_SL2}")
    a(f"s_mov_b32 s{S_SL2}, s{S_SL3}")
    a(f"s_mov_b32 s{S_SL3}, s{S_T}")
    a(f"s_add_u32 s{S_KMO}, s{S_KMO}, 65536")
    a(f"s_add_u32 s{S_STEP}, s{S_STEP}, 1")
    if stamps:
        stamp(13)
        a("s_waitcnt lgkmcnt(0)")
        srd(a, S_W, 4, 0x1000000, off_imm=STAMPS)
        a(f"s_lshl_b32 s{S_T}, s{S_X}, 5")
        a(f"s_add_u32 s{S_T}, s{S_T}, s{S_J}")
        a(f"s_lshl_b32 s{S_T}, s{S_T}, 2")
        a(f"s_add_u32 s{S_T}, s{S_T}, s{S_WV}")
        a(f"s_lshl_b32 s{S_T}, s{S_T}, 6")
        a(f"s_add_u32 s{S_T}, s{S_T}, s{S_STEP}")
        a(f"s_sub_u32 s{S_T}, s{S_T}, 1")
        a(f"s_lshl_b32 s{S_T}, s{S_T}, 7")
        ks = o.get('w3s', range(28))
        for k in range(28):
            a(f"v_writelane_b32 v{T}, s{S_ST + 2*k}, {k}")
        a(f"v_writelane_b32 v{T}, s{S_SPIN}, 31")
        a(f"v_lshlrev_b32 v{T+1}, 2, v{r.L}")
        a(f"v_mov_b32 v{T+2}, {OOB:#x}")
        a(f"v_cmp_gt_u32 vcc, 32, v{r.L}")
        a(f"v_cndmask_b32 v{T+1}, v{T+2}, v{T+1}, vcc")
        a(f"buffer_store_dword v{T}, v{T+1}, s[{S_W}:{S_W+3}], s{S_T} offen")
    a("s_barrier")
    a(f"s_branch {name}_step")
    a.lines += cold.lines
    a.label(f"{name}_done")
    a("s_waitcnt vmcnt(0)")

def roles(a, name, exit_label, chain_xcc_mask=0x55, calib=True):
    a(f"s_load_dwordx2 s[6:7], s[0:1], {KA['dbg']}")
    a(f"s_load_dwordx2 s[4:5], s[0:1], {KA['ws']}")
    a("s_getreg_b32 s37, hwreg(HW_REG_XCC_ID)")
    a("s_and_b32 s37, s37, 7")
    a("s_lshl_b32 s36, s37, 3")
    a("s_lshl_b64 s[38:39], 1, s36")
    a("v_mov_b32 v2, s38")
    a("v_mov_b32 v3, s39")
    a("v_mov_b32 v1, 0")
    a("s_waitcnt lgkmcnt(0)")
    srd(a, 8, 6, 256)
    a("v_cmp_eq_u32 vcc, 0, v0")
    a("s_and_saveexec_b64 s[40:41], vcc")
    a(f"s_cbranch_execz {name}_r1")
    a("buffer_atomic_add_x2 v[2:3], v1, s[8:11], 0 offen sc0 sc1")
    a("s_waitcnt vmcnt(0)")
    a("ds_write_b64 v1, v[2:3]")
    a("s_waitcnt lgkmcnt(0)")
    a.label(f"{name}_r1")
    a("s_mov_b64 exec, s[40:41]")
    a("s_barrier")
    a("ds_read_b64 v[2:3], v1")
    a("s_waitcnt lgkmcnt(0)")
    a("s_barrier")
    a("v_sad_u8 v4, v2, 0, 0")
    a("v_sad_u8 v4, v3, 0, v4")
    a("v_readfirstlane_b32 s40, v2")
    a("v_readfirstlane_b32 s41, v3")
    a("v_readfirstlane_b32 s35, v4")
    a("s_nop 3")
    a("s_cmp_ge_u32 s35, 256")
    a(f"s_cbranch_scc1 {exit_label}")
    a("s_add_u32 s42, s40, s38")
    a("s_addc_u32 s43, s41, s39")
    a("s_lshr_b64 s[38:39], s[40:41], s36")
    a("s_and_b32 s38, s38, 0xff")
    if calib:
        a("s_cmp_lg_u32 s35, 0")
        a(f"s_cbranch_scc1 {name}_r6")
        srd(a, 12, 4, RING_BYTES, off_imm=RING)
        a("s_mov_b32 s44, -1")
        a("s_mov_b32 s45, -1")
        a("v_mov_b32 v5, 8192")
        for rep in range(4):
            for k in range(2):
                a("s_memtime s[46:47]")
                a("s_waitcnt lgkmcnt(0)")
                a(f"buffer_load_dword v2, v{1 + 4 * k}, s[12:15], 0 offen offset:{128 * rep} sc1")
                a("s_waitcnt vmcnt(0)")
                a("s_memtime s[48:49]")
                a("s_waitcnt lgkmcnt(0)")
                a("s_sub_u32 s46, s48, s46")
                a(f"s_min_u32 s{44 + k}, s{44 + k}, s46")
        a("s_cmp_lt_u32 s45, s44")
        a("s_cselect_b32 s44, 1, 0")
        a("s_lshr_b32 s45, s37, 2")
        a(f"s_xor_b32 s44, s44, s45")
        if chain_xcc_mask == 0xf0: a("s_xor_b32 s44, s44, 1")
        a("s_add_u32 s44, s44, 1")
        a("v_mov_b32 v2, s44")
        a("buffer_store_dword v2, v1, s[8:11], 0 offen offset:12 sc1")
        a.label(f"{name}_r6")
    a("s_cmp_lg_u32 s35, 255")
    a(f"s_cbranch_scc1 {name}_r2")
    a("s_xor_b32 s39, s42, 0x20202020")
    a("s_xor_b32 s3, s43, 0x20202020")
    a("s_or_b32 s39, s39, s3")
    a("s_cselect_b32 s3, 2, 1")
    a("v_mov_b32 v2, s3")
    a("buffer_store_dword v2, v1, s[8:11], 0 offen offset:8 sc1")
    a.label(f"{name}_r2")
    a("s_mov_b32 s39, 0")
    a.label(f"{name}_r3")
    a("buffer_load_dwordx2 v[2:3], v1, s[8:11], 0 offen offset:8 sc1")
    a("s_waitcnt vmcnt(0)")
    a("v_readfirstlane_b32 s3, v2")
    a("v_readfirstlane_b32 s33, v3")
    a("s_add_u32 s39, s39, 1")
    a(f"s_cmp_ge_u32 s39, {SPIN_MAX}")
    a(f"s_cbranch_scc1 {exit_label}")
    a("s_cmp_eq_u32 s3, 0")
    a(f"s_cbranch_scc1 {name}_r3")
    if calib:
        a("s_cmp_eq_u32 s33, 0")
        a(f"s_cbranch_scc1 {name}_r3")
        a("s_sub_u32 s33, s33, 1")
        a("s_lshl_b32 s33, s33, 13")
    a("s_cmp_eq_u32 s3, 1")
    a(f"s_cbranch_scc1 {name}_r4")
    a("s_lshr_b32 s25, s35, 5")
    a("s_and_b32 s26, s35, 31")
    a("s_cmp_lt_u32 s35, 128")
    a(f"s_branch {name}_r5")
    a.label(f"{name}_r4")
    a(f"s_lshl_b32 s39, 1, s37")
    a(f"s_sub_u32 s25, s39, 1")
    a(f"s_and_b32 s25, s25, {chain_xcc_mask}")
    a("s_bcnt1_i32_b32 s25, s25")
    a("s_mov_b32 s26, s38")
    a(f"s_and_b32 s39, s39, {chain_xcc_mask}")
    a("s_cselect_b32 s39, s38, 99")
    a("s_cmp_lt_u32 s39, 32")
    a.label(f"{name}_r5")

def gen_chain_test(a, name, stamps=True, force_slow=False, o={}):
    r = CR()
    kernel_header(a, name)
    roles(a, name, f"{name}_end", o.get('mask', 0x55))
    a(f"s_cbranch_scc0 {name}_end")
    if 'pol' in o: a(f"s_xor_b32 s33, s33, {o.get('pol', 0) * 8192}")
    chain_setup(a, r, 33)
    chain_weights(a, r)
    a("s_barrier")
    if not force_slow:
        a("s_cmp_eq_u32 s3, 2")
        a(f"s_cbranch_scc1 {name}_end")
        chain_loop(a, r, name + "_f", True, stamps, o)
    else:
        chain_loop(a, r, name + "_s", False, stamps, o)
    a.label(f"{name}_end")
    a("s_endpgm")
    accum = (r.end + 3) // 4 * 4
    return dict(vgpr=accum + 256, accum=accum, lds=CH_LDS, grid=256, block=256)
```

```python
from asmlib import *

class GemmCfg:
    def __init__(self, WM, WN, TM, TN, BKS, NS, K, ldb, a_rtstride, swap, vbase=0, ntail=None, prio=False):
        self.WM, self.WN, self.TM, self.TN = WM, WN, TM, TN
        self.BKS, self.NS, self.K, self.ldb = BKS, NS, K, ldb
        self.a_rtstride = a_rtstride
        self.swap = swap
        self.NW = WM * WN
        self.BM = 32 * WM * TM
        self.BN = 32 * WN * TN
        self.BK = 16 * BKS
        self.nA = self.BM // 32 * BKS
        self.nB = self.BN // 128 * 4 * BKS
        assert self.nA % self.NW == 0 and self.nB % self.NW == 0
        self.nAw = self.nA // self.NW
        self.nBw = self.nB // self.NW
        self.ND = self.nAw + self.nBw
        self.Abytes = self.nA * 1024
        self.SLOT = (self.nA + self.nB) * 1024
        self.NST = K // self.BK
        assert self.NST % NS == 0
        self.lds = self.SLOT * NS
        self.ntail = ntail if ntail is not None else (self.ND + BKS - 1) // BKS
        self.vbase = vbase
        self.prio = prio

S_SRD_A, S_SRD_B = 8, 12
S_AOFF, S_BOFF = 20, 21
S_M0A, S_M0B = 22, 23
S_CNT = 24
S_WAVE = 25
S_T0, S_T1 = 26, 27

class GemmRegs:
    def __init__(self, c):
        v = c.vbase
        self.lane = v; v += 1
        self.tmp = v; v += 3
        v = (v + 1) // 2 * 2
        self.vA = [v + i for i in range(c.nAw)]; v += c.nAw
        self.vB = [v + i for i in range(c.nBw)]; v += c.nBw
        self.win = []
        self.winbase = []
        for s in range(c.NS):
            off = s * c.SLOT
            if not self.winbase or off + c.SLOT - self.winbase[-1] > 65536:
                self.winbase.append(off)
            self.win.append(len(self.winbase) - 1)
        nw = len(self.winbase)
        self.vX = [v + i for i in range(nw)]; v += nw
        self.vW = [[v + w * c.TN + t for t in range(c.TN)] for w in range(nw)]; v += nw * c.TN
        v = (v + 3) // 4 * 4
        self.fX = [[v + (s * (c.TM + c.TN) + t) * 4 for t in range(c.TM)] for s in range(2)]
        self.fW = [[v + (s * (c.TM + c.TN) + c.TM + t) * 4 for t in range(c.TN)] for s in range(2)]
        v += 2 * (c.TM + c.TN) * 4
        self.vend = v

def gemm_setup(a, c, r):
    L, T = r.lane, r.tmp
    a(f"v_and_b32 v{L}, 63, v0")
    a(f"v_lshrrev_b32 v{T}, 6, v0")
    a("s_nop 0")
    a(f"v_readfirstlane_b32 s{S_WAVE}, v{T}")
    a("s_nop 3")
    for i in range(c.nAw):
        a(f"s_mul_i32 s{S_T0}, s{S_WAVE}, {c.nAw}")
        a(f"s_add_u32 s{S_T0}, s{S_T0}, {i}")
        sh = c.BKS.bit_length() - 1
        a(f"s_lshr_b32 s{S_T1}, s{S_T0}, {sh}")
        a(f"s_mul_i32 s{S_T1}, s{S_T1}, {c.a_rtstride}")
        a(f"s_and_b32 s{S_T0}, s{S_T0}, {c.BKS-1}")
        a(f"s_lshl_b32 s{S_T0}, s{S_T0}, 10")
        a(f"s_add_u32 s{S_T0}, s{S_T0}, s{S_T1}")
        if (i % 4):
            a(f"s_sub_u32 s{S_T0}, s{S_T0}, {(i % 4) * 1024}")
        a(f"v_lshl_add_u32 v{r.vA[i]}, v{L}, 4, s{S_T0}")
    a(f"s_mul_i32 s{S_M0A}, s{S_WAVE}, {c.nAw * 1024}")
    a(f"v_lshrrev_b32 v{T}, 4, v{L}")
    a(f"v_lshlrev_b32 v{T+1}, 2, v{T}")
    a(f"v_and_b32 v{T+2}, 15, v{L}")
    a(f"v_xor_b32 v{T+2}, v{T+2}, v{T+1}")
    a(f"v_lshlrev_b32 v{T+2}, 4, v{T+2}")
    a(f"s_mov_b32 s{S_T0}, {c.ldb}")
    a(f"v_mul_lo_u32 v{T}, v{T}, s{S_T0}")
    a(f"v_add_u32 v{T}, v{T}, v{T+2}")
    nrq = 4 * c.BKS
    shq = nrq.bit_length() - 1
    for i in range(c.nBw):
        a(f"s_mul_i32 s{S_T0}, s{S_WAVE}, {c.nBw}")
        a(f"s_add_u32 s{S_T0}, s{S_T0}, {i}")
        a(f"s_lshr_b32 s{S_T1}, s{S_T0}, {shq}")
        a(f"s_lshl_b32 s{S_T1}, s{S_T1}, 8")
        a(f"s_and_b32 s{S_T0}, s{S_T0}, {nrq-1}")
        a(f"s_mul_i32 s{S_T0}, s{S_T0}, {4*c.ldb}")
        a(f"s_add_u32 s{S_T0}, s{S_T0}, s{S_T1}")
        if i % 4:
            a(f"s_sub_u32 s{S_T0}, s{S_T0}, {(i % 4) * 1024}")
        a(f"v_add_u32 v{r.vB[i]}, s{S_T0}, v{T}")
    a(f"s_mul_i32 s{S_M0B}, s{S_WAVE}, {c.nBw * 1024}")
    a(f"s_add_u32 s{S_M0B}, s{S_M0B}, {c.Abytes}")
    a(f"s_and_b32 s{S_T0}, s{S_WAVE}, {c.WM-1}")
    a(f"s_mul_i32 s{S_T0}, s{S_T0}, {c.TM * c.BKS * 1024}")
    a(f"v_lshl_add_u32 v{r.vX[0]}, v{L}, 4, s{S_T0}")
    for w in range(1, len(r.winbase)):
        a(f"v_add_u32 v{r.vX[w]}, {r.winbase[w]}, v{r.vX[0]}")
    a(f"v_lshrrev_b32 v{T}, 5, v{L}")
    a(f"v_lshlrev_b32 v{T}, 10, v{T}")
    a(f"v_bfe_u32 v{T+1}, v{L}, 4, 1")
    a(f"v_lshl_add_u32 v{T}, v{T+1}, 5, v{T}")
    a(f"v_and_b32 v{T+1}, 3, v{L}")
    a(f"v_lshl_add_u32 v{T}, v{T+1}, 3, v{T}")
    a(f"v_bfe_u32 v{T+1}, v{L}, 2, 2")
    a(f"v_lshl_add_u32 v{T}, v{T+1}, 8, v{T}")
    shm = c.WM.bit_length() - 1
    for tn in range(c.TN):
        a(f"s_lshr_b32 s{S_T0}, s{S_WAVE}, {shm}")
        a(f"s_mul_i32 s{S_T0}, s{S_T0}, {c.TN}")
        a(f"s_add_u32 s{S_T0}, s{S_T0}, {tn}")
        a(f"s_and_b32 s{S_T1}, s{S_T0}, 3")
        a(f"v_xor_b32 v{T+2}, s{S_T1}, v{T+1}")
        a(f"v_lshl_add_u32 v{T+2}, v{T+2}, 6, v{T}")
        a(f"s_lshr_b32 s{S_T0}, s{S_T0}, 2")
        a(f"s_mul_i32 s{S_T0}, s{S_T0}, {nrq * 1024}")
        a(f"v_add_u32 v{r.vW[0][tn]}, s{S_T0}, v{T+2}")
        for w in range(1, len(r.winbase)):
            a(f"v_add_u32 v{r.vW[w][tn]}, {r.winbase[w]}, v{r.vW[0][tn]}")

def dma_group(c, r, slot):
    out = []
    for i in range(c.nAw):
        ins = []
        if i % 4 == 0:
            ins.append(f"s_add_u32 m0, s{S_M0A}, {slot * c.SLOT + (i // 4) * 4096}")
            ins.append("s_nop 0")
        o = (i % 4) * 1024
        ins.append(f"buffer_load_dwordx4 v{r.vA[i]}, s[{S_SRD_A}:{S_SRD_A+3}], s{S_AOFF} offen" + (f" offset:{o}" if o else "") + " lds")
        if i == c.nAw - 1:
            ins.append(f"s_add_u32 s{S_AOFF}, s{S_AOFF}, {c.BKS * 1024}")
        out.append(ins)
    for i in range(c.nBw):
        ins = []
        if i % 4 == 0:
            ins.append(f"s_add_u32 m0, s{S_M0B}, {slot * c.SLOT + (i // 4) * 4096}")
            ins.append("s_nop 0")
        o = (i % 4) * 1024
        ins.append(f"buffer_load_dwordx4 v{r.vB[i]}, s[{S_SRD_B}:{S_SRD_B+3}], s{S_BOFF} offen" + (f" offset:{o}" if o else "") + " lds")
        if i == c.nBw - 1:
            ins.append(f"s_add_u32 s{S_BOFF}, s{S_BOFF}, {c.BK * c.ldb}")
        out.append(ins)
    return out

def frag_reads(c, r, slot, ks, fset):
    w = r.win[slot]
    so = slot * c.SLOT - r.winbase[w]
    xs = [f"ds_read_b128 {vr(r.fX[fset][tm], 4)}, v{r.vX[w]} offset:{so + (tm * c.BKS + ks) * 1024}" for tm in range(c.TM)]
    ws = []
    for tn in range(c.TN):
        b = so + c.Abytes + 4 * ks * 1024
        ws.append(f"ds_read_b64_tr_b16 {vr(r.fW[fset][tn], 2)}, v{r.vW[w][tn]} offset:{b}")
        ws.append(f"ds_read_b64_tr_b16 {vr(r.fW[fset][tn] + 2, 2)}, v{r.vW[w][tn]} offset:{b + 2048}")
    out = []
    xi, wi = 0, 0
    while xi < len(xs) or wi < len(ws):
        if wi < len(ws):
            out += ws[wi:wi + 2]; wi += 2
        if xi < len(xs):
            out.append(xs[xi]); xi += 1
    return out

def mfmas(c, r, fset):
    out = []
    for tm in range(c.TM):
        rng = range(c.TN) if tm % 2 == 0 else reversed(range(c.TN))
        for tn in rng:
            acc = ar((tm * c.TN + tn) * 16, 16)
            X, W = vr(r.fX[fset][tm], 4), vr(r.fW[fset][tn], 4)
            if getattr(c, "fake16", False):
                for q in range(2):
                    ac = ar((tm * c.TN + tn) * 16 + (fset * 2 + q) * 4, 4)
                    X2 = vr(r.fX[fset][(tm + q) % c.TM], 4)
                    out.append(f"v_mfma_f32_16x16x32_bf16 {ac}, {W}, {X2}, {ac}")
            elif c.swap:
                out.append(f"v_mfma_f32_32x32x16_bf16 {acc}, {W}, {X}, {acc}")
            else:
                out.append(f"v_mfma_f32_32x32x16_bf16 {acc}, {X}, {W}, {acc}")
    return out

def emit_kstep(a, mf, pre, reads, dmas, rpg=2):
    if len(mf) > 16: rpg = 1
    n = len(mf)
    gaps = [[] for _ in range(n)]
    gaps[0] += pre
    g = 0 if not pre else 1
    if g >= n: g = n - 1
    k = 0
    while k < len(reads):
        gaps[min(g, n - 1)] += reads[k:k + rpg]
        k += rpg; g += 1
    if dmas:
        first = min(g, n - 1)
        avail = n - first
        if avail < len(dmas):
            first = max(1 if pre else 0, n - len(dmas)); avail = n - first
        for i, d in enumerate(dmas):
            gaps[first + (i * avail) // len(dmas)] += d
    a("s_waitcnt lgkmcnt(0)")
    for i in range(n):
        a(mf[i])
        for x in gaps[i]:
            a(x)

def emit_stage(a, c, r, slot, head, tail, vm, has_next):
    nh = len(head)
    per = (nh + max(c.BKS - 2, 0)) // max(c.BKS - 1, 1)
    for ks in range(c.BKS):
        fset = ks & 1
        mf = mfmas(c, r, fset)
        if ks < c.BKS - 1:
            d = head[ks * per:(ks + 1) * per]
            emit_kstep(a, mf, [], frag_reads(c, r, slot, ks + 1, fset ^ 1), d)
        else:
            if has_next:
                pre = [f"s_waitcnt vmcnt({vm})", "s_barrier"]
                rd = frag_reads(c, r, (slot + 1) % c.NS, 0, fset ^ 1)
            else:
                pre, rd = [], []
            emit_kstep(a, mf, pre, rd, tail)

def gemm_main(a, c, r, stamp=None):
    nt = c.ntail
    for s in range(c.NS - 1):
        for d in dma_group(c, r, s):
            for x in d: a(x)
    g = dma_group(c, r, c.NS - 1)
    for d in g[:nt]:
        for x in d: a(x)
    for i in range(16 * c.TM * c.TN):
        a(f"v_accvgpr_write_b32 a{i}, 0")
    a(f"s_waitcnt vmcnt({(c.NS - 2) * c.ND + nt})")
    a("s_barrier")
    if stamp: stamp(1)
    for x in frag_reads(c, r, 0, 0, 0):
        a(x)
    nit = (c.NST - c.NS) // c.NS
    a(f"s_mov_b32 s{S_CNT}, {nit}")
    lp = a.uid("Lgemm")
    a(".p2align 4") if False else None
    a.label(lp)
    for s in range(c.NS):
        head = dma_group(c, r, (s - 1) % c.NS)[nt:]
        tail = dma_group(c, r, s)[:nt]
        emit_stage(a, c, r, s, head, tail, (c.NS - 2) * c.ND, True)
    a(f"s_sub_u32 s{S_CNT}, s{S_CNT}, 1")
    a(f"s_cmp_lg_u32 s{S_CNT}, 0")
    a(f"s_cbranch_scc1 {lp}")
    for s in range(c.NS):
        head = dma_group(c, r, (s - 1) % c.NS)[nt:] if s == 0 else []
        emit_stage(a, c, r, s, head, [], max(c.NS - 2 - s, 0) * c.ND, s < c.NS - 1)
    a("s_nop 15")

def epi_frag_bf16(a, c, r, srd_out, out_rtstride, vtmp):
    T = r.tmp
    shm = c.WM.bit_length() - 1
    a(f"s_and_b32 s{S_T0}, s{S_WAVE}, {c.WM-1}")
    a(f"s_mul_i32 s{S_T0}, s{S_T0}, {c.TM * out_rtstride}")
    a(f"s_lshr_b32 s{S_T1}, s{S_WAVE}, {shm}")
    a(f"s_mul_i32 s{S_T1}, s{S_T1}, {c.TN * 2048}")
    a(f"s_add_u32 s{S_T0}, s{S_T0}, s{S_T1}")
    a(f"v_lshl_add_u32 v{T}, v{r.lane}, 4, s{S_T0}")
    k = 0
    for tm in range(c.TM):
        for tn in range(c.TN):
            a(f"s_mov_b32 s{S_T0}, {tm * out_rtstride + tn * 2048}")
            acc = (tm * c.TN + tn) * 16
            b = vtmp + (k % 2) * 24; k += 1
            for i in range(16):
                a(f"v_accvgpr_read_b32 v{b + 8 + i}, a{acc + i}")
            for i in range(8):
                a(f"v_cvt_pk_bf16_f32 v{b + i}, v{b + 8 + 2*i}, v{b + 9 + 2*i}")
            a(f"buffer_store_dwordx4 {vr(b, 4)}, v{T}, s[{srd_out}:{srd_out+3}], s{S_T0} offen")
            a(f"buffer_store_dwordx4 {vr(b + 4, 4)}, v{T}, s[{srd_out}:{srd_out+3}], s{S_T0} offen offset:1024")
```

```python
from asmlib import *
from layout import *
import struct, math
from gemm import GemmCfg, GemmRegs, frag_reads, mfmas, emit_kstep

def f2u(x): return struct.unpack("<I", struct.pack("<f", x))[0]

S_SRD_A, S_SRD_B, S_SRD_O = 8, 12, 16
S_AOFF, S_BOFF = 20, 21
S_M0A, S_M0B = 22, 23
S_CNT = 24
S_WAVE = 25
S_T0, S_T1 = 26, 27
S_BINC = 28
S_RTS, S_LDB = 29, 30
S_NIT = 31
S_AUX = 32
S_AUX2 = 36

def shape(WM, WN, TM, TN, BKS, NS, swap, vbase=1, ntail=None):
    return GemmCfg(WM, WN, TM, TN, BKS, NS, 16 * BKS * NS, 0, 0, swap, vbase=vbase, ntail=ntail)

def wave_setup(a, r):
    a(f"v_and_b32 v{r.lane}, 63, v0")
    a(f"v_lshrrev_b32 v{r.tmp}, 6, v0")
    a(f"v_readfirstlane_b32 s{S_WAVE}, v{r.tmp}")

def static_setup(a, c, r):
    L, T = r.lane, r.tmp
    nrq = 4 * c.BKS
    a(f"s_mul_i32 s{S_M0A}, s{S_WAVE}, {c.nAw * 1024}")
    a(f"s_mul_i32 s{S_M0B}, s{S_WAVE}, {c.nBw * 1024}")
    a(f"s_add_u32 s{S_M0B}, s{S_M0B}, {c.Abytes}")
    a(f"s_and_b32 s{S_T0}, s{S_WAVE}, {c.WM-1}")
    a(f"s_mul_i32 s{S_T0}, s{S_T0}, {c.TM * c.BKS * 1024}")
    a(f"v_lshl_add_u32 v{r.vX[0]}, v{L}, 4, s{S_T0}")
    for w in range(1, len(r.winbase)):
        a(f"v_add_u32 v{r.vX[w]}, {r.winbase[w]}, v{r.vX[0]}")
    a(f"v_lshrrev_b32 v{T}, 5, v{L}")
    a(f"v_lshlrev_b32 v{T}, 10, v{T}")
    a(f"v_bfe_u32 v{T+1}, v{L}, 4, 1")
    a(f"v_lshl_add_u32 v{T}, v{T+1}, 5, v{T}")
    a(f"v_and_b32 v{T+1}, 3, v{L}")
    a(f"v_lshl_add_u32 v{T}, v{T+1}, 3, v{T}")
    a(f"v_bfe_u32 v{T+1}, v{L}, 2, 2")
    a(f"v_lshl_add_u32 v{T}, v{T+1}, 8, v{T}")
    shm = c.WM.bit_length() - 1
    for tn in range(c.TN):
        a(f"s_lshr_b32 s{S_T0}, s{S_WAVE}, {shm}")
        a(f"s_mul_i32 s{S_T0}, s{S_T0}, {c.TN}")
        a(f"s_add_u32 s{S_T0}, s{S_T0}, {tn}")
        a(f"s_and_b32 s{S_T1}, s{S_T0}, 3")
        a(f"v_xor_b32 v{T+2}, s{S_T1}, v{T+1}")
        a(f"v_lshl_add_u32 v{T+2}, v{T+2}, 6, v{T}")
        a(f"s_lshr_b32 s{S_T0}, s{S_T0}, 2")
        a(f"s_mul_i32 s{S_T0}, s{S_T0}, {nrq * 1024}")
        a(f"v_add_u32 v{r.vW[0][tn]}, s{S_T0}, v{T+2}")
        for w in range(1, len(r.winbase)):
            a(f"v_add_u32 v{r.vW[w][tn]}, {r.winbase[w]}, v{r.vW[0][tn]}")

def task_setup(a, c, r):
    L, T = r.lane, r.tmp
    sh = c.BKS.bit_length() - 1
    for i in range(c.nAw):
        a(f"s_mul_i32 s{S_T0}, s{S_WAVE}, {c.nAw}")
        a(f"s_add_u32 s{S_T0}, s{S_T0}, {i}")
        a(f"s_lshr_b32 s{S_T1}, s{S_T0}, {sh}")
        a(f"s_mul_i32 s{S_T1}, s{S_T1}, s{S_RTS}")
        a(f"s_and_b32 s{S_T0}, s{S_T0}, {c.BKS-1}")
        a(f"s_lshl_b32 s{S_T0}, s{S_T0}, 10")
        a(f"s_add_u32 s{S_T0}, s{S_T0}, s{S_T1}")
        if i % 4: a(f"s_sub_u32 s{S_T0}, s{S_T0}, {(i % 4) * 1024}")
        a(f"v_lshl_add_u32 v{r.vA[i]}, v{L}, 4, s{S_T0}")
    a(f"v_lshrrev_b32 v{T}, 4, v{L}")
    a(f"v_lshlrev_b32 v{T+1}, 2, v{T}")
    a(f"v_and_b32 v{T+2}, 15, v{L}")
    a(f"v_xor_b32 v{T+2}, v{T+2}, v{T+1}")
    a(f"v_lshlrev_b32 v{T+2}, 4, v{T+2}")
    a(f"v_mul_lo_u32 v{T}, v{T}, s{S_LDB}")
    a(f"v_add_u32 v{T}, v{T}, v{T+2}")
    nrq = 4 * c.BKS
    shq = nrq.bit_length() - 1
    for i in range(c.nBw):
        a(f"s_mul_i32 s{S_T0}, s{S_WAVE}, {c.nBw}")
        a(f"s_add_u32 s{S_T0}, s{S_T0}, {i}")
        a(f"s_lshr_b32 s{S_T1}, s{S_T0}, {shq}")
        a(f"s_lshl_b32 s{S_T1}, s{S_T1}, 8")
        a(f"s_and_b32 s{S_T0}, s{S_T0}, {nrq-1}")
        a(f"s_lshl_b32 s{S_T0}, s{S_T0}, 2")
        a(f"s_mul_i32 s{S_T0}, s{S_T0}, s{S_LDB}")
        a(f"s_add_u32 s{S_T0}, s{S_T0}, s{S_T1}")
        if i % 4: a(f"s_sub_u32 s{S_T0}, s{S_T0}, {(i % 4) * 1024}")
        a(f"v_add_u32 v{r.vB[i]}, s{S_T0}, v{T}")
    a(f"s_mul_i32 s{S_BINC}, s{S_LDB}, {c.BK}")
    a(f"s_mov_b32 s{S_AOFF}, 0")
    a(f"s_mov_b32 s{S_BOFF}, 0")

def dma_group(c, r, slot):
    out = []
    for i in range(c.nAw):
        ins = []
        if i % 4 == 0:
            ins.append(f"s_add_u32 m0, s{S_M0A}, {slot * c.SLOT + (i // 4) * 4096}")
            ins.append("s_nop 0")
        o = (i % 4) * 1024
        ins.append(f"buffer_load_dwordx4 v{r.vA[i]}, s[{S_SRD_A}:{S_SRD_A+3}], s{S_AOFF} offen" + (f" offset:{o}" if o else "") + " lds")
        if i == c.nAw - 1:
            ins.append(f"s_add_u32 s{S_AOFF}, s{S_AOFF}, {c.BKS * 1024}")
        out.append(ins)
    for i in range(c.nBw):
        ins = []
        if i % 4 == 0:
            ins.append(f"s_add_u32 m0, s{S_M0B}, {slot * c.SLOT + (i // 4) * 4096}")
            ins.append("s_nop 0")
        o = (i % 4) * 1024
        ins.append(f"buffer_load_dwordx4 v{r.vB[i]}, s[{S_SRD_B}:{S_SRD_B+3}], s{S_BOFF} offen" + (f" offset:{o}" if o else "") + " lds")
        if i == c.nBw - 1:
            ins.append(f"s_add_u32 s{S_BOFF}, s{S_BOFF}, s{S_BINC}")
        out.append(ins)
    return out

def emit_stage(a, c, r, slot, head, tail, vm, has_next):
    nh = len(head)
    per = (nh + max(c.BKS - 2, 0)) // max(c.BKS - 1, 1)
    for ks in range(c.BKS):
        fset = ks & 1
        mf = mfmas(c, r, fset)
        if ks < c.BKS - 1:
            d = head[ks * per:(ks + 1) * per]
            emit_kstep(a, mf, [], frag_reads(c, r, slot, ks + 1, fset ^ 1), d)
        else:
            if has_next:
                pre = [f"s_waitcnt vmcnt({vm})", "s_barrier"]
                rd = frag_reads(c, r, (slot + 1) % c.NS, 0, fset ^ 1)
            else:
                pre, rd = [], []
            emit_kstep(a, mf, pre, rd, tail)

def n_prologue(c):
    return (c.NS - 1) * c.ND + c.ntail

def gemm_prologue(a, c, r):
    for s in range(c.NS - 1):
        for d in dma_group(c, r, s):
            for x in d: a(x)
    for d in dma_group(c, r, c.NS - 1)[:c.ntail]:
        for x in d: a(x)

def acc_zero(a, c):
    for i in range(16 * c.TM * c.TN):
        a(f"v_accvgpr_write_b32 a{i}, 0")

def bias_load(a, c, r, srd, soff):
    T = r.tmp
    shm = c.WM.bit_length() - 1
    a(f"s_lshr_b32 s{S_T1}, s{S_WAVE}, {shm}")
    a(f"s_mul_i32 s{S_T1}, s{S_T1}, {c.TN * 64}")
    a(f"v_lshrrev_b32 v{T}, 5, v{r.lane}")
    a(f"v_lshl_add_u32 v{T}, v{T}, 3, s{S_T1}")
    b = r.fX[0][0]
    for tn in range(c.TN):
        for q in range(4):
            a(f"buffer_load_dwordx2 {vr(b + tn * 8 + q * 2, 2)}, v{T}, s[{srd}:{srd+3}], s{soff} offen offset:{tn * 64 + q * 16}")

def acc_bias(a, c, r):
    b = r.fX[0][0]
    t = b + 8 * c.TN
    for tn in range(c.TN):
        for k in range(8):
            a(f"v_lshlrev_b32 v{t}, 16, v{b + tn * 8 + k}")
            a(f"v_and_b32 v{t + 1}, 0xffff0000, v{b + tn * 8 + k}")
            for tm in range(c.TM):
                acc = (tm * c.TN + tn) * 16 + 2 * k
                a(f"v_accvgpr_write_b32 a{acc}, v{t}")
                a(f"v_accvgpr_write_b32 a{acc + 1}, v{t + 1}")
            t ^= 2

def gemm_loop(a, c, r, younger=0):
    nt = c.ntail
    a(f"s_waitcnt vmcnt({min(63, (c.NS - 2) * c.ND + nt + younger)})")
    a("s_barrier")
    for x in frag_reads(c, r, 0, 0, 0):
        a(x)
    a(f"s_mov_b32 s{S_CNT}, s{S_NIT}")
    lp = a.uid("Lgemm")
    a.label(lp)
    for s in range(c.NS):
        head = dma_group(c, r, (s - 1) % c.NS)[nt:]
        tail = dma_group(c, r, s)[:nt]
        emit_stage(a, c, r, s, head, tail, (c.NS - 2) * c.ND, True)
    a(f"s_sub_u32 s{S_CNT}, s{S_CNT}, 1")
    a(f"s_cmp_lg_u32 s{S_CNT}, 0")
    a(f"s_cbranch_scc1 {lp}")
    for s in range(c.NS):
        head = dma_group(c, r, (s - 1) % c.NS)[nt:] if s == 0 else []
        emit_stage(a, c, r, s, head, [], max(c.NS - 2 - s, 0) * c.ND, s < c.NS - 1)

def out_lane_addr(a, c, r, rts, dst):
    shm = c.WM.bit_length() - 1
    a(f"s_and_b32 s{S_T0}, s{S_WAVE}, {c.WM-1}")
    a(f"s_mul_i32 s{S_T0}, s{S_T0}, {c.TM * rts}")
    a(f"s_lshr_b32 s{S_T1}, s{S_WAVE}, {shm}")
    a(f"s_mul_i32 s{S_T1}, s{S_T1}, {c.TN * 2048}")
    a(f"s_add_u32 s{S_T0}, s{S_T0}, s{S_T1}")
    a(f"v_lshl_add_u32 v{dst}, v{r.lane}, 4, s{S_T0}")

GC0 = -2 * math.log2(math.e) * math.sqrt(2 / math.pi)
GC1 = GC0 * 0.044715

def epi_frag(a, c, r, rts, act=None, sc=""):
    T = r.tmp
    out_lane_addr(a, c, r, rts, T)
    vt = r.fX[0][0]
    if act == 'gelu':
        a(f"s_mov_b32 s40, {f2u(GC1):#x}"); a(f"s_mov_b32 s41, s40")
        a(f"s_mov_b32 s42, {f2u(GC0):#x}"); a(f"s_mov_b32 s43, s42")
    if act == 'silu':
        a(f"s_mov_b32 s40, {f2u(-math.log2(math.e)):#x}"); a(f"s_mov_b32 s41, s40")
    k = 0
    for tm in range(c.TM):
        for tn in range(c.TN):
            acc = (tm * c.TN + tn) * 16
            b = vt + (k % 2) * 8; x = vt + 16; z = vt + 32; k += 1
            a(f"s_mov_b32 s{S_T0}, {tm * rts + tn * 2048}")
            for i in range(16):
                a(f"v_accvgpr_read_b32 v{x + i}, a{acc + i}")
            if act == 'gelu':
                for i in range(0, 16, 2): a(f"v_pk_mul_f32 {vr(z + i, 2)}, {vr(x + i, 2)}, {vr(x + i, 2)}")
                a(f"v_mov_b32 v{T+1}, s42")
                for i in range(0, 16, 2): a(f"v_pk_fma_f32 {vr(z + i, 2)}, {vr(z + i, 2)}, s[40:41], {vr(z + 16, 2)}") if False else \
                    a(f"v_pk_fma_f32 {vr(z + i, 2)}, {vr(z + i, 2)}, s[40:41], {vr(T + 1 - ((T + 1) & 1), 2)} op_sel:[0,0,{(T + 1) & 1}] op_sel_hi:[1,1,{(T + 1) & 1}]")
                for i in range(0, 16, 2): a(f"v_pk_mul_f32 {vr(z + i, 2)}, {vr(z + i, 2)}, {vr(x + i, 2)}")
            if act == 'silu':
                for i in range(0, 16, 2): a(f"v_pk_mul_f32 {vr(z + i, 2)}, {vr(x + i, 2)}, s[40:41]")
            if act:
                for i in range(16): a(f"v_exp_f32 v{z + i}, v{z + i}")
                for i in range(0, 16, 2): a(f"v_pk_add_f32 {vr(z + i, 2)}, {vr(z + i, 2)}, 1.0 op_sel_hi:[1,0]")
                for i in range(16): a(f"v_rcp_f32 v{z + i}, v{z + i}")
                for i in range(0, 16, 2): a(f"v_pk_mul_f32 {vr(x + i, 2)}, {vr(x + i, 2)}, {vr(z + i, 2)}")
            for i in range(8):
                a(f"v_cvt_pk_bf16_f32 v{b + i}, v{x + 2*i}, v{x + 1 + 2*i}")
            a(f"buffer_store_dwordx4 {vr(b, 4)}, v{T}, s[{S_SRD_O}:{S_SRD_O+3}], s{S_T0} offen{sc}")
            a(f"buffer_store_dwordx4 {vr(b + 4, 4)}, v{T}, s[{S_SRD_O}:{S_SRD_O+3}], s{S_T0} offen offset:1024{sc}")

def final_addr(a, c, r, vg, vo):
    out_lane_addr(a, c, r, 65536, vg)
    shm = c.WM.bit_length() - 1
    a(f"s_and_b32 s{S_T0}, s{S_WAVE}, {c.WM-1}")
    a(f"s_mul_i32 s{S_T0}, s{S_T0}, {c.TM * 65536}")
    a(f"s_lshr_b32 s{S_T1}, s{S_WAVE}, {shm}")
    a(f"s_mul_i32 s{S_T1}, s{S_T1}, {c.TN * 64}")
    a(f"s_add_u32 s{S_T0}, s{S_T0}, s{S_T1}")
    a(f"v_and_b32 v{r.tmp}, 31, v{r.lane}")
    a(f"v_lshl_add_u32 v{vo}, v{r.tmp}, 11, s{S_T0}")
    a(f"v_lshrrev_b32 v{r.tmp}, 5, v{r.lane}")
    a(f"v_lshl_add_u32 v{vo}, v{r.tmp}, 4, v{vo}")

def epi_final(a, c, r, vb, depth=2):
    vg, vo = vb, vb + 1
    buf = (vb + 2 + 3) // 4 * 4
    w = buf + 16 * depth
    final_addr(a, c, r, vg, vo)
    tiles = [(tm, tn) for tm in range(c.TM) for tn in range(c.TN)]
    def ld(k):
        tm, tn = tiles[k]; b = buf + 16 * (k % depth)
        a(f"s_mov_b32 s{S_T0}, {tm * 65536 + tn * 2048}")
        a(f"s_mov_b32 s{S_T1}, {tm * 65536}")
        a(f"buffer_load_dwordx4 {vr(b, 4)}, v{vg}, s[{S_AUX}:{S_AUX+3}], s{S_T0} offen")
        a(f"buffer_load_dwordx4 {vr(b + 4, 4)}, v{vg}, s[{S_AUX}:{S_AUX+3}], s{S_T0} offen offset:1024")
        a(f"buffer_load_dwordx4 {vr(b + 8, 4)}, v{vo}, s[{S_AUX2}:{S_AUX2+3}], s{S_T1} offen offset:{tn * 64}")
        a(f"buffer_load_dwordx4 {vr(b + 12, 4)}, v{vo}, s[{S_AUX2}:{S_AUX2+3}], s{S_T1} offen offset:{tn * 64 + 32}")
    n = len(tiles)
    for k in range(min(depth, n)): ld(k)
    for k, (tm, tn) in enumerate(tiles):
        b = buf + 16 * (k % depth); acc = (tm * c.TN + tn) * 16
        s_, g_, o_ = w, w + 16, w + 32
        for i in range(16): a(f"v_accvgpr_read_b32 v{s_ + i}, a{acc + i}")
        y = 0
        for j in range(k + 1, min(k + depth, n)): y += 4
        for j in range(max(0, k - depth + 1), k): y += 2
        a(f"s_waitcnt vmcnt({y})")
        for q in range(2):
            a(f"v_permlane32_swap_b32 v{b + 8 + 4*q}, v{b + 10 + 4*q}")
            a(f"v_permlane32_swap_b32 v{b + 9 + 4*q}, v{b + 11 + 4*q}")
        for i in range(8):
            a(f"v_lshlrev_b32 v{g_ + 2*i}, 16, v{b + i}")
            a(f"v_and_b32 v{g_ + 2*i + 1}, 0xffff0000, v{b + i}")
        for i in range(8):
            t = b + 2 * (i % 4)
            a(f"v_lshlrev_b32 v{t}, 16, v{b + 8 + i}")
            a(f"v_and_b32 v{t + 1}, 0xffff0000, v{b + 8 + i}")
            a(f"v_pk_fma_f32 {vr(s_ + 2*i, 2)}, {vr(s_ + 2*i, 2)}, {vr(g_ + 2*i, 2)}, {vr(t, 2)}")
        for i in range(8):
            a(f"v_cvt_pk_bf16_f32 v{o_ + i}, v{s_ + 2*i}, v{s_ + 2*i + 1}")
        for q in range(2):
            a(f"v_permlane32_swap_b32 v{o_ + 4*q}, v{o_ + 2 + 4*q}")
            a(f"v_permlane32_swap_b32 v{o_ + 1 + 4*q}, v{o_ + 3 + 4*q}")
        a(f"s_mov_b32 s{S_T1}, {tm * 65536}")
        a(f"buffer_store_dwordx4 {vr(o_, 4)}, v{vo}, s[{S_SRD_O}:{S_SRD_O+3}], s{S_T1} offen offset:{tn * 64}")
        a(f"buffer_store_dwordx4 {vr(o_ + 4, 4)}, v{vo}, s[{S_SRD_O}:{S_SRD_O+3}], s{S_T1} offen offset:{tn * 64 + 32}")
        if k + depth < n: ld(k + depth)
    return w + 40

S_MASK = 40
S_CS = 72
S_KOFF, S_MOFF = 73, 74
def attn_masks(a, r):
    T = r.tmp
    a(f"v_and_b32 v{T}, 31, v{r.lane}")
    a(f"v_lshrrev_b32 v{T+1}, 5, v{r.lane}")
    a(f"v_lshlrev_b32 v{T+1}, 2, v{T+1}")
    a(f"v_sub_u32 v{T}, v{T}, v{T+1}")
    for i in range(16):
        a(f"v_cmp_le_i32 s[{S_MASK + 2*i}:{S_MASK + 2*i + 1}], {8 * (i >> 2) + (i & 3)}, v{T}")
    a(f"s_mov_b32 s{S_CS}, {f2u(128 ** -0.5 * math.log2(math.e)):#x}")

def epi_attn(a, c, r, sc="", wait=None):
    assert c.TM == 4 and c.TN == 4
    T = r.tmp
    QB = 24; S = QB + 128; SM = S + 16; O = SM + 16; X = O + 32
    vK, vKM, vVM, NEG, M = X, X + 1, X + 2, X + 3, X + 4
    OB = X + 8
    assert r.fX[0][0] >= QB and OB + 16 <= 256
    out_lane_addr(a, c, r, 262144, vK)
    shm = c.WM.bit_length() - 1
    a(f"s_and_b32 s{S_T0}, s{S_WAVE}, {c.WM-1}")
    a(f"s_mul_i32 s{S_T0}, s{S_T0}, {c.TM * 65536}")
    a(f"s_lshr_b32 s{S_T1}, s{S_WAVE}, {shm}")
    a(f"s_mul_i32 s{S_T1}, s{S_T1}, {c.TN * 512}")
    a(f"s_add_u32 s{S_T0}, s{S_T0}, s{S_T1}")
    a(f"v_lshl_add_u32 v{vVM}, v{r.lane}, 3, s{S_T0}")
    a(f"v_add_u32 v{vVM}, {VM - KM}, v{vVM}")
    a(f"v_and_b32 v{T}, 31, v{r.lane}")
    a(f"v_lshrrev_b32 v{T+1}, 5, v{r.lane}")
    a(f"v_lshl_add_u32 v{T+1}, v{T+1}, 3, v{T}")
    a(f"v_lshl_add_u32 v{vKM}, v{T+1}, 4, s{S_T0}")
    a(f"v_mov_b32 v{T+1}, 0x40000000")
    a(f"v_cmp_gt_u32 vcc, 8, v{T}")
    a(f"v_cndmask_b32 v{vKM}, v{T+1}, v{vKM}, vcc")
    a(f"v_mov_b32 v{NEG}, {f2u(-1e9 * 128 ** 0.5):#x}")
    def qconv(p):
        for cc in range(4):
            acc = (p * 4 + cc) * 16
            for i in range(16): a(f"v_accvgpr_read_b32 v{O + i}, a{acc + i}")
            for i in range(8): a(f"v_cvt_pk_bf16_f32 v{QB + 32 * p + 8 * cc + i}, v{O + 2*i}, v{O + 2*i + 1}")
    def base(p): return 128 * (p & 1)
    def loads(p):
        A = base(p)
        if wait: wait(p)
        a(f"s_mov_b32 s{S_KOFF}, {p * 262144}")
        a(f"s_mov_b32 s{S_MOFF}, {p * 65536}")
        for k in range(8):
            if k == 4: a(f"s_add_u32 s{S_KOFF}, s{S_KOFF}, 4096")
            a(f"buffer_load_dwordx4 {ar(A + 4 * k, 4)}, v{vK}, s[{S_AUX}:{S_AUX+3}], s{S_KOFF} offen offset:{(k % 4) * 1024}")
        for k in range(8):
            a(f"buffer_load_dwordx4 {ar(A + 32 + 4 * k, 4)}, v{vKM}, s[{S_AUX2}:{S_AUX2+3}], s{S_MOFF} offen offset:{k * 256}{sc}")
        a(f"s_add_u32 s{S_KOFF}, s{S_KOFF}, {VX - KX - 4096}")
        for k in range(8):
            if k == 4: a(f"s_add_u32 s{S_KOFF}, s{S_KOFF}, 4096")
            a(f"buffer_load_dwordx4 {ar(A + 64 + 4 * k, 4)}, v{vK}, s[{S_AUX}:{S_AUX+3}], s{S_KOFF} offen offset:{(k % 4) * 1024}")
        for k in range(4):
            a(f"buffer_load_dwordx2 {ar(A + 96 + 4 * k, 2)}, v{vVM}, s[{S_AUX2}:{S_AUX2+3}], s{S_MOFF} offen offset:{k * 512}{sc}")
    def zeros(p):
        for k in range(4):
            for j in (2, 3): a(f"v_accvgpr_write_b32 a{base(p) + 96 + 4 * k + j}, 0")
    qconv(0); qconv(1); loads(0); zeros(0); qconv(2); qconv(3); loads(1); zeros(1)
    for p in range(4):
        A = base(p); Q = QB + 32 * p
        younger = (28 if p < 3 else 0) + (8 if 0 < p else 0)
        a(f"s_waitcnt vmcnt({min(63, younger + 12)})")
        for k in range(8):
            a(f"v_mfma_f32_32x32x16_bf16 {vr(S, 16)}, {ar(A + 4 * k, 4)}, {vr(Q + 4 * k, 4)}, {vr(S, 16) if k else 0}")
            a(f"v_mfma_f32_32x32x16_bf16 {vr(SM, 16)}, {ar(A + 32 + 4 * k, 4)}, {vr(Q + 4 * k, 4)}, {vr(SM, 16) if k else 0}")
        for i in range(16):
            a(f"v_cndmask_b32 v{S + i}, v{NEG}, v{S + i}, s[{S_MASK + 2*i}:{S_MASK + 2*i + 1}]")
        a(f"v_max3_f32 v{M}, v{S}, v{S+1}, v{S+2}")
        a(f"v_max3_f32 v{M+1}, v{S+3}, v{S+4}, v{S+5}")
        for i in range(6, 18, 4):
            a(f"v_max3_f32 v{M}, v{M}, v{S+i}, v{S+i+1}")
            a(f"v_max3_f32 v{M+1}, v{M+1}, v{S+i+2}, v{S+i+3}")
        a(f"v_max3_f32 v{M}, v{M}, v{S+18}, v{S+19}")
        a(f"v_max_f32 v{M}, v{M}, v{M+1}")
        a(f"v_mov_b32 v{M+1}, v{M}")
        a(f"v_permlane32_swap_b32 v{M+1}, v{M}")
        a(f"v_max_f32 v{M}, v{M}, v{M+1}")
        a(f"v_mul_f32 v{M}, s{S_CS}, v{M}")
        for i in range(20): a(f"v_fma_f32 v{S + i}, v{S + i}, s{S_CS}, -v{M}")
        for i in range(20): a(f"v_exp_f32 v{S + i}, v{S + i}")
        for i in range(10): a(f"v_cvt_pk_bf16_f32 v{Q + i}, v{S + 2*i}, v{S + 2*i + 1}")
        a(f"v_mov_b32 v{Q + 10}, 0")
        a(f"v_mov_b32 v{Q + 11}, 0")
        a(f"s_waitcnt vmcnt({min(63, younger)})")
        def pv(cc, d):
            a(f"v_mfma_f32_32x32x16_bf16 {vr(d, 16)}, {ar(A + 64 + 8 * cc, 4)}, {vr(Q, 4)}, 0")
            a(f"v_mfma_f32_32x32x16_bf16 {vr(d, 16)}, {ar(A + 68 + 8 * cc, 4)}, {vr(Q + 4, 4)}, {vr(d, 16)}")
            a(f"v_mfma_f32_32x32x16_bf16 {vr(d, 16)}, {ar(A + 96 + 4 * cc, 4)}, {vr(Q + 8, 4)}, {vr(d, 16)}")
        pv(0, O)
        for i in range(0, 8, 2): a(f"v_pk_add_f32 {vr(S + i, 2)}, {vr(S + i, 2)}, {vr(S + 8 + i, 2)}")
        pv(1, O + 16)
        a(f"v_pk_add_f32 {vr(S, 2)}, {vr(S, 2)}, {vr(S + 16, 2)}")
        a(f"v_pk_add_f32 {vr(S + 2, 2)}, {vr(S + 2, 2)}, {vr(S + 18, 2)}")
        a(f"v_pk_add_f32 {vr(S, 2)}, {vr(S, 2)}, {vr(S + 4, 2)}")
        a(f"v_pk_add_f32 {vr(S + 2, 2)}, {vr(S + 2, 2)}, {vr(S + 6, 2)}")
        a(f"v_pk_add_f32 {vr(S, 2)}, {vr(S, 2)}, {vr(S + 2, 2)}")
        a(f"v_add_f32 v{M}, v{S}, v{S+1}")
        a(f"v_mov_b32 v{M+1}, v{M}")
        a(f"v_permlane32_swap_b32 v{M+1}, v{M}")
        a(f"v_add_f32 v{M}, v{M}, v{M+1}")
        a(f"v_rcp_f32 v{M}, v{M}")
        pv(2, S); pv(3, Q + 16)
        for cc, d in enumerate((O, O + 16, S, Q + 16)):
            ob = OB + 8 * (cc & 1)
            if cc % 2 == 0: a(f"s_mov_b32 s{S_T0}, {p * 262144 + cc * 2048}")
            for i in range(0, 16, 2):
                a(f"v_pk_mul_f32 {vr(d + i, 2)}, {vr(d + i, 2)}, {vr(M, 2)} op_sel_hi:[1,0]")
            for i in range(8): a(f"v_cvt_pk_bf16_f32 v{ob + i}, v{d + 2*i}, v{d + 2*i + 1}")
            o = (cc & 1) * 2048
            a(f"buffer_store_dwordx4 {vr(ob, 4)}, v{vK}, s[{S_SRD_O}:{S_SRD_O+3}], s{S_T0} offen offset:{o}{sc}")
            a(f"buffer_store_dwordx4 {vr(ob + 4, 4)}, v{vK}, s[{S_SRD_O}:{S_SRD_O+3}], s{S_T0} offen offset:{o + 1024}{sc}")
        if p + 2 < 4: loads(p + 2)
```

```python
import re
REG = re.compile(r'^[-|]*(v|a|s)(?:(\d+)|\[(\d+):(\d+)\])\|?$')
TRANS = ('v_exp_f32', 'v_log_f32', 'v_rcp_f32', 'v_rsq_f32', 'v_sqrt_f32', 'v_sin_f32', 'v_cos_f32')
def regs(tok):
    tok = tok.strip()
    if tok in ('vcc', 'vcc_lo', 'vcc_hi'): return [('s', 'vcc')]
    if tok in ('exec', 'exec_lo', 'exec_hi'): return [('s', 'exec')]
    if tok == 'm0': return [('s', 'm0')]
    m = REG.match(tok)
    if not m: return []
    k = m.group(1)
    if m.group(2) is not None: return [(k, int(m.group(2)))]
    return [(k, i) for i in range(int(m.group(3)), int(m.group(4)) + 1)]

def passes(op):
    if '32x32' in op: return 8
    if '16x16' in op: return 4
    raise ValueError(op)

class I:
    def __init__(self, line):
        s = line.split(';')[0].strip()
        self.line = line
        self.label = None; self.op = None
        if not s or s.startswith('.'):
            return
        if s.endswith(':'):
            self.label = s[:-1]; return
        p = s.split(None, 1)
        self.op = op = p[0]
        rest = p[1] if len(p) > 1 else ''
        toks = [t.strip() for t in re.split(r',(?![^\[]*\])', rest)] if rest else []
        mods = ''
        if toks:
            q = toks[-1].split(None, 1)
            toks[-1] = q[0]
            mods = q[1] if len(q) > 1 else ''
        self.toks, self.mods = toks, mods
        R = [regs(t) for t in toks]
        self.kind = 'other'
        self.w = []; self.r = []; self.rc = []; self.sdata = []
        self.n = 1
        if op == 's_nop':
            self.n = int(toks[0], 0) + 1
        elif op.startswith('v_mfma') or op.startswith('v_smfmac'):
            self.kind = 'mfma'; self.p = passes(op)
            self.w = R[0]
            if op.startswith('v_mfma'):
                self.r = R[1] + R[2]; self.rc = R[3]
            else:
                self.r = R[1] + R[2] + R[3]; self.rc = R[0]
        elif op.startswith('v_'):
            self.kind = 'valu'
            self.dpp = ('row_' in mods or 'quad_perm' in mods or '_dpp' in op)
            self.perm = op.startswith('v_permlane')
            self.rl = op.startswith('v_readlane') or op.startswith('v_readfirstlane')
            self.trans = op.replace('_e32', '').replace('_e64', '') in TRANS
            if op == 'v_nop':
                pass
            elif self.perm and 'swap' in op:
                self.w = R[0] + R[1]; self.r = R[0] + R[1]
            elif '_co_' in op:
                self.w = R[0] + R[1]; self.r = sum(R[2:], [])
            else:
                self.w = R[0]; self.r = sum(R[1:], [])
                if op.startswith('v_fmac') or op.startswith('v_mac') or self.dpp or op.startswith('v_writelane') or 'op_sel' in mods or op.startswith('v_pk_fmac'):
                    self.r = self.r + R[0]
                if op.startswith('v_cndmask') and len(toks) == 3: self.r = self.r + [('s', 'vcc')]
                if op.startswith('v_cmpx'): self.w = self.w + [('s', 'exec')]
        elif op.startswith('ds_'):
            self.kind = 'mem'
            if op.startswith('ds_read') or op.startswith('ds_bpermute') or op.startswith('ds_permute') or op.startswith('ds_swizzle') or 'rtn' in op:
                self.w = R[0]; self.r = sum(R[1:], [])
            else:
                self.r = sum(R, [])
        elif op.startswith('buffer_') or op.startswith('global_'):
            self.kind = 'mem'
            self.lds = bool(re.search(r'\blds\b', mods))
            if 'load' in op and not self.lds:
                self.w = R[0]; self.r = sum(R[1:], [])
            elif 'load' in op:
                self.r = sum(R, []) + [('s', 'm0')]
            else:
                self.r = sum(R, [])
                if 'atomic' in op and 'sc0' in mods: self.w = R[0]
                if 'x3' in op or 'x4' in op: self.sdata = R[0] if op.startswith('buffer_') else R[1]
        elif op.startswith('s_'):
            self.kind = 'salu'
            if R and not op.startswith('s_cmp') and not op.startswith('s_cbranch') and not op.startswith('s_bitcmp'):
                self.w = R[0]
            if 'saveexec' in op: self.w = self.w + [('s', 'exec')]

BIG = 32
def need(st, i):
    n = 0
    def chk(tag, rs, ws):
        nonlocal n
        for r in rs:
            a = st.get((tag, r))
            if a is not None and ws - a > n: n = ws - a
    if i.kind == 'mfma':
        chk('valu', i.r + i.rc, 2)
        chk('valu', [('s', 'exec')], 4)
        for p, w in ((4, 8), (8, 12)):
            chk(f'mf{p}', i.r, w)
        for p, w in ((4, 6), (8, 10)):
            for r in i.rc:
                a = st.get((f'mf{p}', r))
                if a is not None:
                    if st.get(('mfid', r)) == (p, tuple(i.rc)) and p == i.p: continue
                    if w - a > n: n = w - a
        for p, w in ((4, 6), (8, 10)):
            for r in i.w:
                if r in i.rc: continue
                a = st.get((f'mf{p}', r))
                if a is not None and w - a > n: n = w - a
    elif i.kind == 'valu':
        for p, w in ((4, 8), (8, 12)):
            chk(f'mf{p}', i.r + i.w, w)
        for p, w in ((4, 3), (8, 7)):
            chk(f'mc{p}', i.w, w)
        vr = [r for r in i.r if r[0] != 's']; sr = [r for r in i.r if r[0] == 's']
        if i.dpp: chk('valu', vr, 2); chk('valu', [('s', 'exec')], 5)
        if i.perm: chk('valu', vr, 2); chk('valu', [('s', 'exec')], 4)
        if i.rl: chk('valu', vr, 1); chk('valu', sr, 4); chk('valu', [('s', 'exec')], 4)
        chk('valu', sr, 2)
        if not i.trans: chk('trans', vr, 1)
        chk('sdata', i.w, 2)
    elif i.kind == 'mem':
        for p, w in ((4, 8), (8, 12)):
            chk(f'mf{p}', i.r + i.w, w)
        chk('valu', [r for r in i.r if r[0] == 's'], 5)
        chk('salu', [r for r in i.r if r == ('s', 'm0')], 1)
        chk('sdata', i.w, 1)
    elif i.kind == 'salu':
        pass
    return n

def step(st, i, extra):
    d = extra + i.n
    new = {}
    for k, a in st.items():
        if k[0] == 'mfid':
            new[k] = a
        elif a + d < BIG:
            new[k] = a + d
    for k in [k for k in new if k[0] == 'mfid']:
        if ('mf4', k[1]) not in new and ('mf8', k[1]) not in new: del new[k]
    if i.kind == 'mfma':
        for r in i.w:
            new.pop(('valu', r), None); new.pop(('mf4', r), None); new.pop(('mf8', r), None)
            new[(f'mf{i.p}', r)] = 0
            new[('mfid', r)] = (i.p, tuple(i.w))
        for r in i.rc: new[(f'mc{i.p}', r)] = 0
    elif i.kind == 'valu':
        for r in i.w:
            new[('valu', r)] = 0
            if i.trans: new[('trans', r)] = 0
            else: new.pop(('trans', r), None)
    elif i.kind == 'mem':
        for r in i.sdata: new[('sdata', r)] = 0
    elif i.kind == 'salu':
        for r in i.w:
            if r == ('s', 'm0'): new[('salu', r)] = 0
            new.pop(('valu', r), None)
    return new

def merge(a, b):
    out = dict(a)
    for k, v in b.items():
        if k[0] == 'mfid':
            if k in out and out[k] != v: out[k] = None
            elif k not in out: out[k] = v
        elif k not in out or v < out[k]: out[k] = v
    return out

def fix(lines, verbose=False):
    ins = [I(l) for l in lines]
    pad = [0] * len(ins)
    at_label = {}
    for it in range(4):
        st = {}; alive = True; changed = False
        for n, i in enumerate(ins):
            if i.label is not None:
                if i.label.endswith('_kernel'): st = {}; alive = True
                b = at_label.get(i.label)
                if b is not None: st = merge(st, b) if alive else dict(b)
                alive = True
                continue
            if i.op is None: continue
            k = need(st, i)
            if k > pad[n]: pad[n] = k; changed = True
            st = step(st, i, pad[n])
            if i.op.startswith('s_cbranch') or i.op == 's_branch':
                t = i.toks[0]
                old = at_label.get(t)
                m = merge(old, st) if old is not None else dict(st)
                if m != old: at_label[t] = m; changed = True
                if i.op == 's_branch': alive = False; st = {}
            if i.op == 's_endpgm': alive = False; st = {}
        if not changed: break
    out = []; tot = 0
    for n, i in enumerate(ins):
        k = pad[n]
        if k:
            tot += 1
            if verbose: print(f"pad {k} before line {n}: {i.line.strip()}")
            while k > 0:
                q = min(k, 16); out.append(f"    s_nop {q-1}"); k -= q
        out.append(i.line)
    return out, tot
```

```python
XN   = 0x0000000
QX   = 0x0400000
KX   = 0x1400000
VX   = 0x2400000
HH   = 0x3400000
GG   = 0x4400000
OO   = 0x4C00000
KM   = 0x5C00000
VM   = 0x6000000
RING = 0x6400000
RSLOT = 0x88000
R_PART, R_MEM, R_O, R_S = 0, 0x40000, 0x50000, 0x60000
S_HS = 5120
RING_BYTES = 4 * RSLOT
STAMPS = 0x8000000
WS_BYTES = 268435456
KA = dict(x=0, mem0=8, Wq=16, Wk=24, Wv=32, Wo=40, seg=48, Bx=56, w1=64, b1=72, w2=80, b2=88, out=96, dbg=104, ws=112)
```

```python
from asmlib import *
from layout import *

def bf16_round(a, dst, src):
    a(f"v_cvt_pk_bf16_f32 v{dst}, v{src}, v{src}")
    a(f"v_and_b32 v{dst}, 0xffff0000, v{dst}")

def xreduce_add(a, v, t):
    a("s_nop 1")
    a(f"v_add_f32_dpp v{v}, v{v}, v{v} row_ror:8 row_mask:0xf bank_mask:0xf")
    a(f"v_mov_b32 v{t}, v{v}")
    a("s_nop 1")
    a(f"v_permlane16_swap_b32 v{t}, v{v}")
    a(f"v_add_f32 v{v}, v{v}, v{t}")
    a(f"v_mov_b32 v{t}, v{v}")
    a("s_nop 1")
    a(f"v_permlane32_swap_b32 v{t}, v{v}")
    a(f"v_add_f32 v{v}, v{v}, v{t}")

def gen_ln(a, name):
    kernel_header(a, name)
    a("s_cmp_ge_u32 s2, 256")
    a(f"s_cbranch_scc1 {name}_end")
    a(f"s_load_dwordx4 s[4:7], s[0:1], {KA['x']}")
    a("s_waitcnt lgkmcnt(0)")
    srd(a, 24, 6, 16384)
    a(f"s_load_dwordx2 s[6:7], s[0:1], {KA['ws']}")
    a("v_and_b32 v1, 7, v0")
    a("v_lshrrev_b32 v2, 3, v0")
    a("s_lshl_b32 s3, s2, 14")
    a("v_lshlrev_b32 v3, 11, v1")
    a("v_lshl_add_u32 v3, v2, 6, v3")
    a("s_waitcnt lgkmcnt(0)")
    srd(a, 8, 4, 2048 * 2048)
    srd(a, 12, 6, 0x400000, off_imm=XN)
    srd(a, 16, 6, RING_BYTES, off_imm=RING)
    for i in range(4):
        a(f"buffer_load_dwordx4 v[{8+4*i}:{11+4*i}], v3, s[8:11], s3 offen offset:{16*i}")
    a("v_mov_b32 v4, -1\nv_mov_b32 v5, -1\nv_mov_b32 v6, -1\nv_mov_b32 v7, -1")
    a(f"s_mul_i32 s20, s2, {RING_BYTES // 256}")
    a("v_lshlrev_b32 v24, 4, v0")
    a("v_add_u32 v24, s20, v24")
    a("v_mov_b32 v65, 0x40000000")
    for k in range(3):
        a(f"v_add_u32 v64, {4096 * k}, v24")
        a(f"v_subrev_u32 v66, {R_MEM}, v64")
        a("v_cmp_gt_u32 vcc, 0x10000, v66")
        a("v_cndmask_b32 v64, v64, v65, vcc")
        if k == 2:
            a(f"v_cmp_le_u32 vcc, {(RING_BYTES // 256 - 8192) // 16}, v0")
            a("v_cndmask_b32 v64, v64, v65, vcc")
        a("buffer_store_dwordx4 v[4:7], v64, s[16:19], 0 offen")
    a("s_cmp_ge_u32 s2, 16")
    a(f"s_cbranch_scc1 {name}_nomem")
    a("v_bfe_u32 v24, v0, 2, 2")
    a("v_and_b32 v25, 1, v0")
    a("v_lshl_add_u32 v24, v24, 1, v25")
    a("v_lshlrev_b32 v24, 11, v24")
    a("v_bfe_u32 v25, v0, 1, 1")
    a("v_lshl_add_u32 v24, v25, 3, v24")
    a("v_bfe_u32 v25, v0, 4, 1")
    a("v_lshl_add_u32 v24, v25, 4, v24")
    a("v_lshrrev_b32 v25, 5, v0")
    a("v_lshl_add_u32 v24, v25, 6, v24")
    a("s_and_b32 s20, s2, 3")
    a("s_lshl_b32 s20, s20, 9")
    a("buffer_load_dwordx2 v[64:65], v24, s[24:27], s20 offen")
    a("buffer_load_dwordx2 v[66:67], v24, s[24:27], s20 offen offset:32")
    a("s_mov_b32 s21, 0x05040100")
    a("s_mov_b32 s22, 0x07060302")
    a("s_lshl_b32 s20, s2, 12")
    a(f"s_add_u32 s20, s20, {R_MEM}")
    a("v_lshlrev_b32 v24, 4, v0")
    a("s_waitcnt vmcnt(0)")
    a("v_perm_b32 v28, v66, v64, s21")
    a("v_perm_b32 v29, v66, v64, s22")
    a("v_perm_b32 v30, v67, v65, s21")
    a("v_perm_b32 v31, v67, v65, s22")
    a("buffer_store_dwordx4 v[28:31], v24, s[16:19], s20 offen")
    a("s_waitcnt vmcnt(0)")
    a.label(f"{name}_nomem")
    a("s_lshr_b32 s21, s2, 2")
    a("s_lshl_b32 s21, s21, 16")
    a("s_and_b32 s22, s2, 3")
    a("s_lshl_b32 s22, s22, 7")
    a("s_add_u32 s21, s21, s22")
    a("v_lshlrev_b32 v25, 4, v1")
    a("v_lshl_add_u32 v25, v2, 11, v25")
    a("v_lshrrev_b32 v26, 6, v0")
    a("v_lshlrev_b32 v26, 5, v26")
    a("v_lshl_add_u32 v26, v1, 2, v26")
    a("v_lshlrev_b32 v27, 2, v1")
    a("s_waitcnt vmcnt(3)")
    for i in range(16):
        a(f"v_lshlrev_b32 v{32+2*i}, 16, v{8+i}")
        a(f"v_and_b32 v{33+2*i}, 0xffff0000, v{8+i}")
    a("v_add_f32 v28, v32, v33")
    for i in range(2, 32):
        a(f"v_add_f32 v28, v28, v{32+i}")
    xreduce_add(a, 28, 29)
    a("ds_write_b32 v26, v28")
    a("s_waitcnt lgkmcnt(0)")
    a("s_barrier")
    a("ds_read2_b32 v[8:9], v27 offset0:0 offset1:8")
    a("ds_read2_b32 v[10:11], v27 offset0:16 offset1:24")
    a("s_waitcnt lgkmcnt(0)")
    a("v_add_f32 v8, v8, v9\nv_add_f32 v10, v10, v11\nv_add_f32 v8, v8, v10")
    a("v_mul_f32 v8, 0x3a800000, v8")
    a("v_sub_f32 v9, v32, v8")
    a("v_mul_f32 v28, v9, v9")
    for i in range(1, 32):
        a(f"v_sub_f32 v9, v{32+i}, v8")
        a("v_fmac_f32 v28, v9, v9")
    xreduce_add(a, 28, 29)
    a("ds_write_b32 v26, v28 offset:128")
    a("s_waitcnt lgkmcnt(0)")
    a("s_barrier")
    a("ds_read2_b32 v[10:11], v27 offset0:32 offset1:40")
    a("ds_read2_b32 v[12:13], v27 offset0:48 offset1:56")
    a("s_waitcnt lgkmcnt(0)")
    a("v_add_f32 v10, v10, v11\nv_add_f32 v12, v12, v13\nv_add_f32 v10, v10, v12")
    a("v_mul_f32 v10, 0x3a800000, v10")
    bf16_round(a, 8, 8)
    bf16_round(a, 10, 10)
    a("v_add_f32 v10, 0x3727c5ac, v10")
    bf16_round(a, 10, 10)
    a("v_sqrt_f32 v10, v10")
    a("s_nop 0")
    bf16_round(a, 10, 10)
    a("v_rcp_f32 v11, v10")
    a("s_nop 0")
    for i in range(0, 32, 2):
        x0, x1 = 32 + i, 33 + i
        a(f"v_sub_f32 v{x0}, v{x0}, v8")
        a(f"v_sub_f32 v{x1}, v{x1}, v8")
        a(f"v_cvt_pk_bf16_f32 v12, v{x0}, v{x1}")
        a(f"v_lshlrev_b32 v{x0}, 16, v12")
        a(f"v_and_b32 v{x1}, 0xffff0000, v12")
        for x in (x0, x1):
            a(f"v_mul_f32 v13, v{x}, v11")
            a(f"v_fma_f32 v14, -v13, v10, v{x}")
            a(f"v_fma_f32 v{x}, v14, v11, v13")
    for c in range(2):
        for hf in range(2):
            b = 8 + (c * 2 + hf) * 4
            e = 32 + 16 * c + 4 * hf
            a(f"v_cvt_pk_bf16_f32 v{b}, v{e}, v{e+1}")
            a(f"v_cvt_pk_bf16_f32 v{b+1}, v{e+2}, v{e+3}")
            a(f"v_cvt_pk_bf16_f32 v{b+2}, v{e+8}, v{e+9}")
            a(f"v_cvt_pk_bf16_f32 v{b+3}, v{e+10}, v{e+11}")
            a(f"buffer_store_dwordx4 v[{b}:{b+3}], v25, s[12:15], s21 offen offset:{c*1024 + hf*512}")
    a.label(f"{name}_end")
    a("s_endpgm")
    return dict(vgpr=68, accum=68, lds=256, grid=256, block=256)
```

```python
from asmlib import *
from layout import *
from gemm import GemmRegs
from gemm2 import *
from ln import gen_ln
import chain as ch
import hazard, sys

BIG = (2, 2, 4, 4, 2, 4)
SML = (2, 2, 2, 2, 4, 4)
HRT = 229376

def srd_off(a, d, base, soff, nbytes_s=None, nbytes=None):
    a(f"s_add_u32 s{d}, s{base}, s{soff}")
    a(f"s_addc_u32 s{d+1}, s{base+1}, 0")
    a(f"s_mov_b32 s{d+2}, {nbytes:#x}" if nbytes is not None else f"s_mov_b32 s{d+2}, s{nbytes_s}")
    a(f"s_mov_b32 s{d+3}, 0x00020000")

def w_srd(a, base, total, scol):
    a(f"s_add_u32 s12, s{base}, s{scol}")
    a(f"s_addc_u32 s13, s{base+1}, 0")
    a(f"s_sub_u32 s14, {total:#x}, s{scol}")
    a("s_mov_b32 s15, 0x00020000")

def gen_kvf(a, name):
    cK, cV = shape(*BIG, True), shape(*BIG, False)
    r = GemmRegs(cK)
    kernel_header(a, name)
    a("s_cmp_ge_u32 s2, 368")
    a(f"s_cbranch_scc1 {name}_end")
    a(f"s_load_dwordx4 s[44:47], s[0:1], {KA['Wk']}")
    a(f"s_load_dwordx4 s[48:51], s[0:1], {KA['w1']}")
    a(f"s_load_dwordx2 s[4:5], s[0:1], {KA['ws']}")
    wave_setup(a, r); static_setup(a, cK, r)
    a(f"s_mov_b32 s{S_RTS}, 65536")
    a(f"s_mov_b32 s{S_NIT}, 7")
    a("s_cmp_ge_u32 s2, 256")
    a(f"s_cbranch_scc1 {name}_f")
    a("s_and_b32 s52, s2, 7")
    a("s_lshl_b32 s52, s52, 2")
    a("s_lshr_b32 s53, s2, 3")
    a("s_and_b32 s54, s53, 3")
    a("s_add_u32 s52, s52, s54")
    a("s_lshr_b32 s53, s53, 2")
    a(f"s_mov_b32 s{S_LDB}, 8192")
    task_setup(a, cK, r)
    a("s_waitcnt lgkmcnt(0)")
    a("s_lshl_b32 s54, s53, 19")
    a(f"s_add_u32 s54, s54, {XN}")
    srd_off(a, 8, 4, 54, nbytes=8 * 65536)
    a("s_cmp_ge_u32 s52, 16")
    a("s_cselect_b32 s44, s46, s44")
    a("s_cselect_b32 s45, s47, s45")
    a(f"s_cselect_b32 s55, {VX}, {KX}") if False else None
    a(f"s_cselect_b32 s55, {VX - KX}, 0")
    a(f"s_add_u32 s55, s55, {KX}")
    a("s_and_b32 s56, s52, 15")
    a("s_lshl_b32 s54, s56, 9")
    w_srd(a, 44, 1024 * 8192, 54)
    a("s_lshl_b32 s54, s53, 21")
    a("s_add_u32 s54, s54, s55")
    a("s_lshl_b32 s56, s56, 14")
    a("s_add_u32 s54, s54, s56")
    srd_off(a, 16, 4, 54, nbytes=8 * 262144)
    gemm_prologue(a, cK, r)
    acc_zero(a, cK)
    a("s_cmp_ge_u32 s52, 16")
    a(f"s_cbranch_scc1 {name}_v")
    a.label(f"{name}_k")
    gemm_loop(a, cK, r)
    a("s_cmp_ge_u32 s2, 256")
    a(f"s_cbranch_scc1 {name}_fe")
    a(f"s_branch {name}_epi")
    a.label(f"{name}_v")
    gemm_loop(a, cV, r)
    a.label(f"{name}_epi")
    epi_frag(a, cK, r, 262144)
    a("s_endpgm")
    a.label(f"{name}_f")
    a("s_sub_u32 s52, s2, 256")
    a("s_and_b32 s53, s52, 7")
    a("s_lshr_b32 s52, s52, 3")
    a(f"s_mov_b32 s{S_LDB}, 7168")
    task_setup(a, cK, r)
    a("s_waitcnt lgkmcnt(0)")
    a("s_lshl_b32 s54, s53, 19")
    a(f"s_add_u32 s54, s54, {XN}")
    srd_off(a, 8, 4, 54, nbytes=8 * 65536)
    a("s_lshl_b32 s54, s52, 9")
    w_srd(a, 48, 1024 * 7168, 54)
    srd(a, S_AUX, 50, 7168)
    bias_load(a, cK, r, S_AUX, 54)
    a(f"s_mul_i32 s54, s53, {8 * HRT}")
    a(f"s_add_u32 s54, s54, {HH}")
    a("s_lshl_b32 s56, s52, 14")
    a("s_add_u32 s54, s54, s56")
    srd_off(a, 16, 4, 54, nbytes=8 * HRT)
    gemm_prologue(a, cK, r)
    a(f"s_waitcnt vmcnt({n_prologue(cK)})")
    acc_bias(a, cK, r)
    a(f"s_branch {name}_k")
    a.label(f"{name}_fe")
    epi_frag(a, cK, r, HRT, 'gelu')
    a.label(f"{name}_end")
    a("s_endpgm")
    return dict(vgpr=128 + 256, accum=128, lds=cK.lds, grid=368, block=256)

def ffn2_body(a, name, swid):
    c = shape(*SML, True); r = GemmRegs(c)
    a(f"s_load_dwordx4 s[48:51], s[0:1], {KA['w2']}")
    wave_setup(a, r); static_setup(a, c, r)
    a(f"s_mov_b32 s{S_RTS}, {HRT}")
    a(f"s_mov_b32 s{S_LDB}, 2048")
    a(f"s_mov_b32 s{S_NIT}, {3584 // (c.BK * c.NS) - 1}")
    task_setup(a, c, r)
    a(f"s_lshr_b32 s53, s{swid}, 3")
    a(f"s_and_b32 s52, s{swid}, 7")
    a("s_waitcnt lgkmcnt(0)")
    a(f"s_mul_i32 s54, s53, {4 * HRT}")
    a(f"s_add_u32 s54, s54, {HH}")
    srd_off(a, 8, 4, 54, nbytes=4 * HRT)
    a("s_lshl_b32 s54, s52, 8")
    w_srd(a, 48, 3584 * 2048, 54)
    srd(a, S_AUX, 50, 2048)
    bias_load(a, c, r, S_AUX, 54)
    a("s_lshl_b32 s54, s53, 18")
    a(f"s_add_u32 s54, s54, {GG}")
    a("s_lshl_b32 s56, s52, 13")
    a("s_add_u32 s54, s54, s56")
    srd_off(a, 16, 4, 54, nbytes=4 * 65536)
    gemm_prologue(a, c, r)
    a(f"s_waitcnt vmcnt({n_prologue(c)})")
    acc_bias(a, c, r)
    gemm_loop(a, c, r)
    epi_frag(a, c, r, 65536, 'silu')

def gen_chain(a, name, o):
    r = ch.CR()
    mask = o.get('mask', 0x0f)
    kernel_header(a, name)
    ch.roles(a, name, f"{name}_end", mask)
    a(f"s_cbranch_scc0 {name}_wk")
    ch.chain_setup(a, r, 33)
    ch.chain_weights(a, r)
    a("s_barrier")
    a("s_cmp_eq_u32 s3, 2")
    a(f"s_cbranch_scc1 {name}_slow")
    ch.chain_loop(a, r, name + "_f", True, False, o)
    a("s_endpgm")
    a.label(f"{name}_slow")
    ch.chain_loop(a, r, name + "_s", False, False, o)
    a("s_endpgm")
    a.label(f"{name}_wk")
    a("s_sub_u32 s3, s3, 1")
    a("s_lshl_b32 s39, 1, s37")
    a("s_sub_u32 s39, s39, 1")
    a(f"s_and_b32 s39, s39, {0xff & ~mask}")
    a("s_bcnt1_i32_b32 s39, s39")
    a("s_lshl_b32 s39, s39, 5")
    a("s_add_u32 s39, s39, s38")
    a("s_sub_u32 s35, s35, 128")
    a("s_cmp_eq_u32 s3, 0")
    a("s_cselect_b32 s60, s39, s35")
    ffn2_body(a, name, 60)
    a.label(f"{name}_end")
    a("s_endpgm")
    return dict(vgpr=512, accum=256, lds=131072, grid=256, block=256)

def gen_qa(a, name):
    c = shape(*BIG, True); r = GemmRegs(c)
    kernel_header(a, name)
    a("s_cmp_ge_u32 s2, 128")
    a(f"s_cbranch_scc1 {name}_end")
    a(f"s_load_dwordx2 s[6:7], s[0:1], {KA['Wq']}")
    a(f"s_load_dwordx2 s[4:5], s[0:1], {KA['ws']}")
    wave_setup(a, r); static_setup(a, c, r)
    a(f"s_mov_b32 s{S_RTS}, 65536")
    a(f"s_mov_b32 s{S_LDB}, 8192")
    a(f"s_mov_b32 s{S_NIT}, 7")
    task_setup(a, c, r)
    attn_masks(a, r)
    a("s_and_b32 s80, s2, 7")
    a("s_lshl_b32 s80, s80, 1")
    a("s_lshr_b32 s81, s2, 3")
    a("s_and_b32 s82, s81, 1")
    a("s_add_u32 s80, s80, s82")
    a("s_lshr_b32 s81, s81, 1")
    a("s_waitcnt lgkmcnt(0)")
    a("s_lshl_b32 s82, s81, 19")
    a(f"s_add_u32 s82, s82, {XN}")
    srd_off(a, 8, 4, 82, nbytes=8 * 65536)
    a("s_lshl_b32 s82, s80, 9")
    w_srd(a, 6, 1024 * 8192, 82)
    gemm_prologue(a, c, r)
    acc_zero(a, c)
    a("s_lshl_b32 s82, s81, 21")
    a("s_lshl_b32 s83, s80, 14")
    a("s_add_u32 s82, s82, s83")
    a(f"s_add_u32 s83, s82, {OO}")
    srd_off(a, 16, 4, 83, nbytes=8 * 262144)
    a(f"s_add_u32 s83, s82, {KX}")
    srd_off(a, S_AUX, 4, 83, nbytes=VX - KX + 8 * 262144)
    a("s_lshl_b32 s82, s81, 19")
    a("s_lshl_b32 s83, s80, 12")
    a("s_add_u32 s82, s82, s83")
    a(f"s_add_u32 s83, s82, {KM}")
    srd_off(a, S_AUX2, 4, 83, nbytes=VM - KM + 8 * 65536)
    gemm_loop(a, c, r)
    epi_attn(a, c, r)
    a.label(f"{name}_end")
    a("s_endpgm")
    return dict(vgpr=512, accum=256, lds=c.lds, grid=128, block=256)

def gen_wo(a, name):
    c = shape(*SML, True); r = GemmRegs(c)
    kernel_header(a, name)
    a("s_cmp_ge_u32 s2, 128")
    a(f"s_cbranch_scc1 {name}_end")
    a(f"s_load_dwordx2 s[6:7], s[0:1], {KA['Wo']}")
    a(f"s_load_dwordx2 s[4:5], s[0:1], {KA['ws']}")
    a(f"s_load_dwordx2 s[44:45], s[0:1], {KA['x']}")
    a(f"s_load_dwordx2 s[46:47], s[0:1], {KA['out']}")
    wave_setup(a, r); static_setup(a, c, r)
    a(f"s_mov_b32 s{S_RTS}, 262144")
    a(f"s_mov_b32 s{S_LDB}, 2048")
    a(f"s_mov_b32 s{S_NIT}, {4096 // (c.BK * c.NS) - 1}")
    task_setup(a, c, r)
    a("s_and_b32 s53, s2, 7")
    a("s_lshl_b32 s53, s53, 1")
    a("s_bfe_u32 s54, s2, 0x10003")
    a("s_add_u32 s53, s53, s54")
    a("s_lshr_b32 s52, s2, 4")
    a("s_waitcnt lgkmcnt(0)")
    a("s_lshl_b32 s54, s53, 20")
    a(f"s_add_u32 s54, s54, {OO}")
    srd_off(a, 8, 4, 54, nbytes=4 * 262144)
    a("s_lshl_b32 s54, s52, 8")
    w_srd(a, 6, 4096 * 2048, 54)
    gemm_prologue(a, c, r)
    acc_zero(a, c)
    a("s_lshl_b32 s55, s53, 18")
    a("s_add_u32 s54, s54, s55")
    a(f"s_sub_u32 s56, {2048 * 2048}, s54")
    srd_off(a, 16, 46, 54, nbytes_s=56)
    srd_off(a, S_AUX2, 44, 54, nbytes_s=56)
    a("s_lshl_b32 s56, s52, 13")
    a("s_add_u32 s55, s55, s56")
    a(f"s_add_u32 s55, s55, {GG}")
    srd_off(a, S_AUX, 4, 55, nbytes=4 * 65536)
    gemm_loop(a, c, r)
    e = epi_final(a, c, r, r.fX[0][0], depth=4)
    a.label(f"{name}_end")
    a("s_endpgm")
    acc = (max(e, r.vend) + 3) // 4 * 4
    return dict(vgpr=acc + 64, accum=acc, lds=c.lds, grid=128, block=256)

def build(path, o={'mask': 15}):
    a = Asm(); body = Asm(); ks = []
    ks.append(("ln_kernel", gen_ln(body, "ln_kernel")))
    ks.append(("kvf_kernel", gen_kvf(body, "kvf_kernel")))
    ks.append(("chain_kernel", gen_chain(body, "chain_kernel", o)))
    ks.append(("qa_kernel", gen_qa(body, "qa_kernel")))
    ks.append(("wo_kernel", gen_wo(body, "wo_kernel")))
    lines, n = hazard.fix(body.lines, "-v" in sys.argv)
    print("nops inserted", n)
    hdr = open("recurrent_scan__memory_aug_recurrent_mem_tr__dense_activation_gelu__prompt.s.ref").read().split("\n")
    a.lines += [l for l in hdr if l.startswith(";") and "@launch" not in l and "Override" not in l and "grid=ceil" not in l]
    for n, k in ks:
        a.lines.append(f"; @launch kernel={n} grid=({k['grid']},1,1) block=({k['block']},1,1) lds={k['lds']}")
    a.lines.append('.amdgcn_target "amdgcn-amd-amdhsa--gfx950"')
    a.lines += [l[3:] if l.startswith("    ") else l for l in lines]
    for n, k in ks: kernel_desc(a, n, k['vgpr'], k['accum'])
    open(path, "w").write(a.text())
    for n, k in ks: print(n, k)

if __name__ == "__main__":
    build(sys.argv[1])
```

```python
from asmlib import *
from layout import *
import struct, math

S_RING, S_KX, S_KM, S_W = 8, 12, 16, 20
S_STEP, S_X, S_J, S_WV = 24, 25, 26, 27
S_SL0, S_SL1, S_SL2, S_SL3 = 28, 29, 30, 31
S_SPIN = 32
S_KXO = 33
S_KMO = 34
S_CS = 35
S_T = 36
S_ST = 40
S_DBG = 20
S_KVOK = 92
S_PUB = 93
F_Q, F_KV, F_F1, F_F2, F_PROG, F_O = 16, 32, 48, 56, 72, 128
OOB = 0x40000000
SPIN_MAX = 1 << 15
XB, VB, WB = 0, 12288, 16384
CH_LDS = 131072

class CR:
    def __init__(s):
        v = 1
        def al(n, al=1):
            nonlocal v
            v = (v + al - 1) // al * al
            b = v; v += n
            return b
        s.L = al(1); s.T = al(6); s.IDX = al(1)
        for n in "MEMLD OLD XR VW VR WW WR SST SST0 SLD SLD0 OST PST PL1 PL2 PL3 MST KXA VXA KMA PZ0 PZ1 PZ2 FLG PUBA".split():
            setattr(s, n, al(1))
        s.A = al(16, 4)
        s.Q = al(24, 4)
        s.WO = al(8, 4)
        s.KXF = al(8, 4); s.VXF = al(8, 4)
        s.R = al(32, 4)
        s.X = al(4, 4)
        s.S = al(12, 4)
        s.PS = al(24, 4)
        s.VM = al(8, 4)
        s.BM = al(4, 4)
        s.BX = al(4, 4)
        s.O = al(8, 4)
        s.NEG = al(4, 4)
        s.end = v

def wreg(t, i):
    return ar((t * 4 + i) * 8, 8)

def chain_setup(a, r, pol):
    L, T = r.L, r.T
    a(f"v_and_b32 v{L}, 63, v0")
    a(f"v_lshrrev_b32 v{T}, 6, v0")
    a(f"v_readfirstlane_b32 s{S_WV}, v{T}")
    srd(a, S_RING, 4, RING_BYTES, off_imm=RING)
    srd(a, S_KX, 4, VX - KX + 0x1000000, off_imm=KX)
    srd(a, S_KM, 4, VM - KM + 0x400000, off_imm=KM)
    n, g, hf5, b4, n7 = T + 1, T + 2, T + 3, T + 4, T + 5
    a(f"v_and_b32 v{n}, 15, v{L}")
    a(f"v_lshrrev_b32 v{g}, 4, v{L}")
    a(f"v_lshrrev_b32 v{hf5}, 5, v{L}")
    a(f"v_and_b32 v{b4}, 1, v{g}")
    a(f"v_and_b32 v{n7}, 7, v{L}")
    t0, t1, t2, t3 = S_T, S_T + 1, S_T + 2, S_T + 3
    a(f"v_mov_b32 v{r.IDX}, 0x4444")
    a(f"v_mov_b32 v{T}, 0xeeee")
    a(f"v_and_b32 v{r.XR}, 2, v{L}")
    a(f"v_cmp_ne_u32 vcc, 0, v{r.XR}")
    a(f"v_cndmask_b32 v{r.IDX}, v{r.IDX}, v{T}, vcc")
    a(f"v_lshlrev_b32 v{T}, 4, v{L}")
    a(f"v_and_b32 v{r.XR}, 1, v{L}")
    a(f"s_lshl_b32 s{t0}, s{S_X}, 14")
    a(f"s_lshl_b32 s{t1}, s{S_WV}, 12")
    a(f"s_add_u32 s{t1}, s{t1}, s{t0}")
    a(f"s_add_u32 s{t1}, s{t1}, {R_MEM}")
    a(f"v_add_u32 v{r.MEMLD}, s{t1}, v{T}")
    a(f"v_add_u32 v{r.OLD}, {R_O - R_MEM}, v{r.MEMLD}")
    a(f"v_mul_u32_u24 v{r.XR}, 288, v{r.XR}")
    a(f"v_lshl_add_u32 v{r.XR}, v{b4}, 4, v{r.XR}")
    a(f"v_bfe_u32 v{T}, v{L}, 1, 2")
    a(f"v_lshl_add_u32 v{r.XR}, v{T}, 6, v{r.XR}")
    a(f"v_bfe_u32 v{T}, v{L}, 3, 1")
    a(f"v_lshl_add_u32 v{T}, v{hf5}, 1, v{T}")
    a(f"v_mul_u32_u24 v{T}, 768, v{T}")
    a(f"v_add_u32 v{r.XR}, v{r.XR}, v{T}")
    if XB: a(f"v_add_u32 v{r.XR}, {XB}, v{r.XR}")
    a(f"s_lshl_b32 s{t1}, s{S_WV}, 10")
    a(f"s_add_u32 s{t2}, s{t1}, {VB}")
    a(f"v_lshl_add_u32 v{r.VW}, v{L}, 3, s{t2}")
    a(f"s_add_u32 s{t2}, s{t1}, {WB}")
    a(f"v_lshl_add_u32 v{r.WW}, v{L}, 4, s{t2}")
    a(f"v_lshlrev_b32 v{r.WR}, 4, v{L}")
    a(f"v_add_u32 v{r.WR}, {WB}, v{r.WR}")
    a(f"v_lshlrev_b32 v{r.VR}, 3, v{L}")
    a(f"v_lshl_add_u32 v{T}, v{hf5}, 5, v{n}")
    a(f"v_lshlrev_b32 v{T}, 3, v{T}")
    a(f"v_lshl_add_u32 v{T}, v{b4}, 9, v{T}")
    a(f"s_cmp_eq_u32 s{S_WV}, 1")
    a(f"s_cselect_b64 vcc, -1, 0")
    a(f"v_cndmask_b32 v{r.VR}, v{r.VR}, v{T}, vcc")
    a(f"v_add_u32 v{r.VR}, {VB}, v{r.VR}")
    a(f"s_lshr_b32 s{t0}, s{S_J}, 2")
    a(f"s_lshl_b32 s{t1}, s{S_X}, 3")
    a(f"s_add_u32 s{t0}, s{t0}, s{t1}")
    a(f"s_and_b32 s{t1}, s{S_J}, 3")
    a(f"s_mul_i32 s{t2}, s{t0}, {S_HS}")
    a(f"s_add_u32 s{t2}, s{t2}, {R_S}")
    a(f"s_mul_i32 s{t3}, s{t1}, 1280")
    a(f"s_add_u32 s{t3}, s{t3}, s{t2}")
    a(f"v_lshl_add_u32 v{T}, v{g}, 3, v{n7}")
    a(f"v_lshlrev_b32 v{T}, 4, v{T}")
    a(f"v_mov_b32 v{r.PZ0}, {OOB:#x}")
    a(f"v_add_u32 v{r.SST}, s{t3}, v{T}")
    a(f"v_cmp_gt_u32 vcc, 8, v{n}")
    a(f"v_cndmask_b32 v{r.SST}, v{r.PZ0}, v{r.SST}, vcc")
    a(f"v_add_u32 v{r.SST0}, {1024 - 256}, v{r.SST}")
    a(f"v_cmp_lt_u32 vcc, 1, v{g}")
    a(f"v_cndmask_b32 v{r.SST0}, v{r.PZ0}, v{r.SST0}, vcc")
    a(f"v_bfe_u32 v{r.SLD0}, v{L}, 3, 1")
    a(f"v_lshl_add_u32 v{r.SLD}, v{r.SLD0}, 9, v{T}")
    a(f"v_add_u32 v{r.SLD}, s{t2}, v{r.SLD}")
    a(f"v_lshl_add_u32 v{r.SLD0}, v{b4}, 1, v{r.SLD0}")
    a(f"v_lshlrev_b32 v{r.SLD0}, 2, v{r.SLD0}")
    a(f"v_lshl_add_u32 v{r.SLD0}, v{hf5}, 7, v{r.SLD0}")
    a(f"v_lshl_add_u32 v{r.SLD0}, v{n7}, 4, v{r.SLD0}")
    a(f"s_add_u32 s{t2}, s{t2}, 1024")
    a(f"v_add_u32 v{r.SLD0}, s{t2}, v{r.SLD0}")
    a(f"s_lshl_b32 s{t2}, s{S_X}, 14")
    a(f"s_lshl_b32 s{t1}, s{S_J}, 9")
    a(f"s_add_u32 s{t2}, s{t2}, s{t1}")
    a(f"v_lshlrev_b32 v{r.OST}, 8, v{hf5}")
    a(f"v_lshl_add_u32 v{r.OST}, v{b4}, 5, v{r.OST}")
    a(f"v_bfe_u32 v{r.MST}, v{L}, 1, 2")
    a(f"v_lshl_add_u32 v{r.OST}, v{r.MST}, 6, v{r.OST}")
    a(f"v_and_b32 v{r.MST}, 1, v{L}")
    a(f"v_lshl_add_u32 v{r.OST}, v{r.MST}, 4, v{r.OST}")
    a(f"v_add_u32 v{r.OST}, s{t2}, v{r.OST}")
    a(f"v_add_u32 v{r.OST}, {R_O}, v{r.OST}")
    a(f"v_cmp_gt_u32 vcc, 8, v{n}")
    a(f"v_cndmask_b32 v{r.OST}, v{r.PZ0}, v{r.OST}, vcc")
    a(f"v_bfe_u32 v{r.MST}, v{L}, 3, 1")
    a(f"v_lshlrev_b32 v{r.MST}, 8, v{r.MST}")
    a(f"v_lshl_add_u32 v{r.MST}, v{g}, 6, v{r.MST}")
    a(f"v_bfe_u32 v{r.KMA}, v{L}, 2, 1")
    a(f"v_lshl_add_u32 v{r.MST}, v{r.KMA}, 5, v{r.MST}")
    a(f"v_and_b32 v{r.KMA}, 3, v{L}")
    a(f"v_lshl_add_u32 v{r.MST}, v{r.KMA}, 2, v{r.MST}")
    a(f"v_add_u32 v{r.MST}, s{t2}, v{r.MST}")
    a(f"v_add_u32 v{r.MST}, {R_MEM}, v{r.MST}")
    a(f"s_cmp_eq_u32 s{S_WV}, 1")
    a(f"s_cselect_b32 s{t1}, {R_O - R_MEM}, 0")
    a(f"s_add_u32 s{t1}, s{t1}, {R_MEM}")
    a(f"s_add_u32 s{t1}, s{t1}, s{t2}")
    a(f"v_lshl_add_u32 v{r.PZ2}, v{L}, 4, s{t1}")
    a(f"v_cmp_gt_u32 vcc, 32, v{L}")
    a(f"v_cndmask_b32 v{r.PZ2}, v{r.PZ0}, v{r.PZ2}, vcc")
    a(f"s_add_u32 s{t1}, s{t3}, 1024")
    a(f"v_lshl_add_u32 v{r.PZ1}, v{L}, 4, s{t1}")
    a(f"v_cmp_gt_u32 vcc, 16, v{L}")
    a(f"v_cndmask_b32 v{r.PZ1}, v{r.PZ0}, v{r.PZ1}, vcc")
    a(f"s_lshl_b32 s{t0}, s{S_X}, 5")
    a(f"s_add_u32 s{t0}, s{t0}, s{S_J}")
    a(f"s_lshl_b32 s{t1}, s{t0}, 9")
    a(f"v_add_u32 v{r.KMA}, s{t1}, v{T}")
    a(f"v_cmp_lt_u32 vcc, 7, v{n}")
    a(f"v_cndmask_b32 v{r.KMA}, v{r.PZ0}, v{r.KMA}, vcc")
    a(f"s_add_u32 s{t1}, s{t1}, {VM - KM}")
    a(f"v_lshl_add_u32 v{T}, v{L}, 3, s{t1}")
    a(f"s_cmp_eq_u32 s{S_WV}, 1")
    a(f"s_cselect_b64 vcc, -1, 0")
    a(f"v_cndmask_b32 v{r.KMA}, v{r.KMA}, v{T}, vcc")
    a(f"s_lshr_b32 s{t1}, s{S_J}, 1")
    a(f"s_lshl_b32 s{t1}, s{t1}, 14")
    a(f"s_and_b32 s{t2}, s{S_J}, 1")
    a(f"s_lshl_b32 s{t2}, s{t2}, 12")
    a(f"s_add_u32 s{t1}, s{t1}, s{t2}")
    a(f"s_add_u32 s{t1}, s{t1}, s{pol}")
    if R_PART: a(f"s_add_u32 s{t1}, s{t1}, {R_PART}")
    a(f"s_lshl_b32 s{t2}, s{S_X}, 10")
    a(f"s_add_u32 s{t1}, s{t1}, s{t2}")
    a(f"v_lshl_add_u32 v{r.PST}, v{L}, 4, s{t1}")
    a(f"v_xor_b32 v{r.PL1}, 1024, v{r.PST}")
    a(f"v_xor_b32 v{r.PL2}, 2048, v{r.PST}")
    a(f"v_xor_b32 v{r.PL3}, 3072, v{r.PST}")
    a(f"v_lshl_add_u32 v{T}, v{L}, 4, s{t3}")
    a(f"v_cndmask_b32 v{r.PZ0}, v{r.PST}, v{T}, vcc")
    a(f"s_lshl_b32 s{t1}, s{t0}, 11")
    a(f"v_lshlrev_b32 v{T}, 10, v{hf5}")
    a(f"v_lshl_add_u32 v{T}, v{b4}, 9, v{T}")
    a(f"v_add_u32 v{T}, s{t1}, v{T}")
    a(f"v_lshl_add_u32 v{r.VXA}, v{n}, 4, v{T}")
    a(f"v_add_u32 v{r.VXA}, {VX - KX}, v{r.VXA}")
    a(f"v_and_b32 v{r.KXA}, 8, v{L}")
    a(f"v_lshl_add_u32 v{r.KXA}, v{r.KXA}, 1, v{n7}")
    a(f"v_lshl_add_u32 v{r.KXA}, v{r.KXA}, 4, v{T}")
    for i in range(4):
        a(f"v_mov_b32 v{r.NEG + i}, -1")
        a(f"v_mov_b32 v{r.BM + i}, 0")
    for i in range(8):
        a(f"v_mov_b32 v{r.VM + i}, 0")
    a(f"s_mov_b32 s{S_SPIN}, 0")
    cs = struct.unpack("<I", struct.pack("<f", 128 ** -0.5 * math.log2(math.e)))[0]
    a(f"s_mov_b32 s{S_CS}, {cs:#x}")

def chain_weights(a, r):
    L, T = r.L, r.T
    t0, t1, t2, t3 = S_T, S_T + 1, S_T + 2, S_T + 3
    VD, VDO, TR, TRO = r.R, r.R + 1, r.R + 2, r.R + 3
    a(f"s_load_dwordx4 s[44:47], s[0:1], {KA['Wq']}")
    a(f"s_load_dwordx4 s[48:51], s[0:1], {KA['Wv']}")
    a(f"v_lshrrev_b32 v{T}, 2, v{L}")
    a(f"v_and_b32 v{T+1}, 3, v{L}")
    a(f"v_lshlrev_b32 v{T+1}, 4, v{T+1}")
    a(f"s_lshl_b32 s{t0}, s{S_X}, 5")
    a(f"s_add_u32 s{t0}, s{t0}, s{S_J}")
    a(f"s_lshl_b32 s{t0}, s{t0}, 6")
    a(f"s_lshl_b32 s{t1}, s{S_WV}, 21")
    a(f"s_add_u32 s{t0}, s{t0}, s{t1}")
    a(f"v_lshl_add_u32 v{VD}, v{T}, 13, v{T+1}")
    a(f"v_add_u32 v{VD}, s{t0}, v{VD}")
    a(f"s_lshl_b32 s{t0}, s{S_X}, 21")
    a(f"s_lshl_b32 s{t1}, s{S_WV}, 19")
    a(f"s_add_u32 s{t0}, s{t0}, s{t1}")
    a(f"s_lshl_b32 s{t1}, s{S_J}, 6")
    a(f"s_add_u32 s{t0}, s{t0}, s{t1}")
    a(f"v_lshl_add_u32 v{VDO}, v{T}, 11, v{T+1}")
    a(f"v_add_u32 v{VDO}, s{t0}, v{VDO}")
    a(f"s_lshl_b32 s{t2}, s{S_WV}, 15")
    a(f"v_and_b32 v{T}, 3, v{L}")
    a(f"v_lshl_add_u32 v{T}, v{T}, 3, s{t2}")
    a(f"v_bfe_u32 v{T+4}, v{L}, 2, 1")
    a(f"v_bfe_u32 v{T+1}, v{L}, 3, 1")
    a(f"v_bfe_u32 v{T+2}, v{L}, 4, 1")
    a(f"v_lshrrev_b32 v{T+3}, 5, v{L}")
    a(f"v_lshl_add_u32 v{T}, v{T+1}, 8, v{T}")
    a(f"v_lshl_add_u32 v{T}, v{T+3}, 9, v{T}")
    a(f"v_lshl_add_u32 v{TR}, v{T+4}, 10, v{T}")
    a(f"v_lshl_add_u32 v{TR}, v{T+2}, 7, v{TR}")
    a(f"v_lshl_add_u32 v{TRO}, v{T+4}, 6, v{T}")
    a(f"v_lshl_add_u32 v{TRO}, v{T+2}, 10, v{TRO}")
    a("s_waitcnt lgkmcnt(0)")
    def dma(m):
        srd(a, S_W, 44 + 2 * m, 1024 * 8192)
        ld = 8192 if m < 3 else 2048
        a(f"s_add_u32 m0, s{t2}, {(m & 1) * 16384}")
        a(f"s_mov_b32 s{t3}, 0")
        for d in range(16):
            a(f"buffer_load_dwordx4 v{VD if m < 3 else VDO}, s[{S_W}:{S_W+3}], s{t3} offen lds")
            if d < 15:
                a(f"s_add_u32 m0, m0, 1024")
                a(f"s_add_u32 s{t3}, s{t3}, {16 * ld}")
    def trs(m):
        for tile in range(2):
            for i in range(4):
                for q in range(4):
                    off = (m & 1) * 16384 + (64 * i + 32 * (q >> 1) + (1 if m < 3 else 2) * (q & 1)) * 64 + tile * 32
                    b = ((2 * m + tile) * 4 + i) * 8 + 2 * q
                    a(f"ds_read_b64_tr_b16 a[{b}:{b+1}], v{TR if m < 3 else TRO} offset:{off}")
        a("s_waitcnt lgkmcnt(0)")
    dma(0); dma(1)
    a("s_waitcnt vmcnt(16)"); trs(0); dma(2)
    a("s_waitcnt vmcnt(16)"); trs(1); dma(3)
    a("s_waitcnt vmcnt(16)"); trs(2)
    a("s_waitcnt vmcnt(0)"); trs(3)
    a(f"s_mul_i32 m0, s{S_WV}, 3072")
    if XB: a(f"s_add_u32 m0, m0, {XB}")

def smf(a, r, acc, t, i):
    a(f"v_smfmac_f32_16x16x64_bf16 {vr(acc, 4)}, {vr(r.A + 4 * i, 4)}, {wreg(t, i)}, v{r.IDX}")

def pk(a, d, x, y):
    a(f"v_pk_add_f32 {vr(d, 2)}, {vr(x, 2)}, {vr(y, 2)}")

def maxchk(a, t, regs):
    a(f"v_max3_u32 v{t}, v{regs[0]}, v{regs[1]}, v{regs[2]}")
    k = 3
    while k < len(regs):
        if k + 1 < len(regs):
            a(f"v_max3_u32 v{t}, v{t}, v{regs[k]}, v{regs[k+1]}"); k += 2
        else:
            a(f"v_max_u32 v{t}, v{t}, v{regs[k]}"); k += 1
    a(f"v_cmp_eq_u32 vcc, -1, v{t}")

def spin_guard(a, giveup):
    a(f"s_add_u32 s{S_SPIN}, s{S_SPIN}, 1")
    a(f"s_cmp_ge_u32 s{S_SPIN}, {SPIN_MAX}")
    a(f"s_cbranch_scc1 {giveup}")

def gather(a, cold, r, vaddr, slot, work, policy):
    def ld(x, i):
        x(f"buffer_load_dwordx4 {vr(r.A + 4 * i, 4)}, v{vaddr}, s[{S_RING}:{S_RING+3}], s{slot} offen offset:{1024 * i} sc1")
    def chk(x, i):
        maxchk(x, r.T, [r.A + 4 * i + k for k in range(4)])
    K = [a.uid("Lk") for _ in range(4)]; R = [a.uid("Lr") for _ in range(4)]
    BODY, DONE = a.uid("Lbody"), a.uid("Ldone")
    for i in range(4): ld(a, i)
    a("s_waitcnt vmcnt(3)")
    chk(a, 0)
    a(f"s_cbranch_vccnz {R[0]}")
    for i in range(4):
        a.label(K[i])
        w = work(i, a)
        h = len(w) // 2
        if i < 3:
            for f in w[:h]: f()
            a(f"s_waitcnt vmcnt({2 - i})")
            chk(a, i + 1)
            for f in w[h:]: f()
            a(f"s_cbranch_vccnz {R[i + 1]}")
        else:
            for f in w: f()
        c = cold
        c.label(R[i])
        if policy == 'C':
            ld(c, i)
            c(f"s_mov_b32 s{S_T}, {(0xf << (i + 1)) & 0xf}")
            c(f"s_mov_b32 s{S_T + 1}, {1 << i}")
            c("s_waitcnt vmcnt(1)")
            c(f"s_branch {BODY}")
            continue
        spin_guard(c, K[i])
        if policy == 'A':
            for k in range(i, 4): ld(c, k)
            c(f"s_waitcnt vmcnt({3 - i})")
            chk(c, i)
            c(f"s_cbranch_vccnz {R[i]}")
        else:
            ld(c, i)
            c("s_waitcnt vmcnt(0)")
            chk(c, i)
            c(f"s_cbranch_vccnz {R[i]}")
            for k in range(i + 1, 4): ld(c, k)
        c(f"s_branch {K[i]}")
    if policy == 'C':
        a.label(DONE)
        c = cold
        c.label(BODY)
        for i in range(4):
            sk, bad = a.uid("Lsk"), a.uid("Lbad")
            c(f"s_bitcmp0_b32 s{S_T}, {i}")
            c(f"s_cbranch_scc1 {sk}")
            chk(c, i)
            c(f"s_cmp_lt_u32 s{S_SPIN}, {SPIN_MAX}")
            c(f"s_cselect_b64 s[{S_T + 2}:{S_T + 3}], vcc, 0")
            c(f"s_cmp_lg_u64 s[{S_T + 2}:{S_T + 3}], 0")
            c(f"s_cbranch_scc1 {bad}")
            for f in work(i, c): f()
            c(f"s_branch {sk}")
            c.label(bad)
            ld(c, i)
            c(f"s_bitset1_b32 s{S_T + 1}, {i}")
            c.label(sk)
        c(f"s_mov_b32 s{S_T}, s{S_T + 1}")
        c(f"s_mov_b32 s{S_T + 1}, 0")
        c(f"s_add_u32 s{S_SPIN}, s{S_SPIN}, 1")
        c(f"s_cmp_eq_u32 s{S_T}, 0")
        c(f"s_cbranch_scc1 {DONE}")
        c("s_waitcnt vmcnt(0)")
        c(f"s_branch {BODY}")

def chain_loop(a, r, name, fast, stamps=False, o={}):
    st = "" if fast else " sc1"
    RG = f"s[{S_RING}:{S_RING+3}]"
    T = r.T
    cold = Asm(); cold._uid = (1 << 20) + a._uid
    policy = o.get('policy', 'A')
    kst = "" if o.get('kplain') else " sc1"
    q0, q1, k0, k1, v0_, v1_ = [r.Q + 4 * i for i in range(6)]
    def stamp(k):
        if stamps: a(f"{'s_memrealtime' if o.get('rt') else 's_memtime'} s[{S_ST + 2*k}:{S_ST + 2*k + 1}]")
    flags = o.get('flags', False)
    def kvfield(x, seg):
        x(f"s_lshr_b32 s{S_T}, s{seg}, 2")
        x(f"s_lshr_b32 s{S_T + 1}, s{seg}, 3")
        x(f"s_add_u32 s{S_T + 1}, s{S_T + 1}, 2")
        x(f"s_or_b32 s{S_T + 2}, s{seg}, 3")
        x(f"s_or_b32 s{S_T + 3}, s{seg}, 7")
        x(f"s_cmp_lt_u32 s{seg}, 16")
        x(f"s_cselect_b32 s{S_T}, s{S_T}, s{S_T + 1}")
        x(f"s_cselect_b32 s{S_T + 2}, s{S_T + 2}, s{S_T + 3}")
        x(f"s_add_u32 s{S_T + 2}, s{S_T + 2}, 1")
        x(f"s_and_b32 s{S_T + 1}, s{S_T}, 3")
        x(f"s_lshl_b32 s{S_T + 1}, s{S_T + 1}, 3")
        x(f"s_and_b32 s{S_T}, s{S_T}, 12")
        x(f"s_add_u32 s{S_T}, s{S_T}, {F_KV}")
    def prefetch(first=False):
        if flags:
            go, chk, lp, nx = a.uid("Lkg"), a.uid("Lkc"), a.uid("Lkl"), a.uid("Lkn")
            a(f"s_lshr_b32 s94, s{S_KXO}, 18")
            a(f"s_cmp_ge_u32 s94, s{S_KVOK}")
            a(f"s_cbranch_scc1 {chk}")
            a.label(go)
            c = cold
            c.label(chk)
            kvfield(c, 94)
            if first: c(f"s_branch {lp}")
            c.label(lp + "c")
            c(f"v_readfirstlane_b32 s{S_T + 3}, v{r.FLG}")
            c(f"s_lshr_b32 s{S_T + 3}, s{S_T + 3}, s{S_T + 1}")
            c(f"s_and_b32 s{S_T + 3}, s{S_T + 3}, 0xff")
            c(f"s_cmp_ge_u32 s{S_T + 3}, 64")
            c(f"s_cselect_b32 s{S_KVOK}, s{S_T + 2}, s{S_KVOK}")
            c(f"s_cbranch_scc1 {go}")
            spin_guard(c, go)
            c("s_sleep 2")
            c.label(lp)
            c(f"buffer_load_dword v{r.FLG}, off, s[{S_DBG}:{S_DBG+3}], s{S_T} sc1")
            c("s_waitcnt vmcnt(0)")
            c(f"s_branch {lp}c")
        a(f"buffer_load_dwordx4 {vr(r.KXF, 4)}, v{r.KXA}, s[{S_KX}:{S_KX+3}], s{S_KXO} offen")
        a(f"buffer_load_dwordx4 {vr(r.KXF + 4, 4)}, v{r.KXA}, s[{S_KX}:{S_KX+3}], s{S_KXO} offen offset:128")
        a(f"buffer_load_dwordx4 {vr(r.VXF, 4)}, v{r.VXA}, s[{S_KX}:{S_KX+3}], s{S_KXO} offen")
        a(f"buffer_load_dwordx4 {vr(r.VXF + 4, 4)}, v{r.VXA}, s[{S_KX}:{S_KX+3}], s{S_KXO} offen offset:256")
        if flags:
            a(f"s_add_u32 s94, s94, 1")
            a(f"s_cmp_lt_u32 s94, s{S_KVOK}")
            a(f"s_cbranch_scc1 {nx}")
            kvfield(a, 94)
            a(f"buffer_load_dword v{r.FLG}, off, s[{S_DBG}:{S_DBG+3}], s{S_T} sc1")
            a.label(nx)
    def zero_all():
        for i in range(24): a(f"v_mov_b32 v{r.Q + i}, 0")
        for i in range(8): a(f"v_mov_b32 v{r.WO + i}, 0")
    def xreduce():
        for w in range(4):
            a(f"ds_read_b128 {vr(r.R + 8 * w, 4)}, v{r.XR} offset:{w * 3072}")
            a(f"ds_read_b128 {vr(r.R + 8 * w + 4, 4)}, v{r.XR} offset:{w * 3072 + 32}")
    def xsum():
        a("s_waitcnt lgkmcnt(4)")
        for k in range(0, 8, 2): pk(a, r.R + k, r.R + k, r.R + 8 + k)
        a("s_waitcnt lgkmcnt(0)")
        for k in range(0, 8, 2): pk(a, r.R + 16 + k, r.R + 16 + k, r.R + 24 + k)
        for k in range(0, 8, 2): pk(a, r.R + k, r.R + k, r.R + 16 + k)
        for k in range(4):
            a(f"v_cvt_pk_bf16_f32 v{r.X + k}, v{r.R + 2*k}, v{r.R + 2*k + 1}")
    def vrest():
        for i in (1, 2, 3):
            smf(a, r, v0_, 4, i); smf(a, r, v1_, 5, i)
    def vfold():
        pk(a, v0_, v0_, v0_ + 2); pk(a, v0_ + 2, v1_, v1_ + 2)
        a(f"ds_write2st64_b64 v{r.VW}, {vr(v0_, 2)}, {vr(v0_ + 2, 2)} offset0:0 offset1:1")
    def side1():
        a(f"buffer_store_dwordx2 {vr(r.X, 2)}, v{r.KMA}, s[{S_KM}:{S_KM+3}], s{S_KMO} offen{kst}")
        a(f"buffer_store_dwordx4 {vr(r.NEG, 4)}, v{r.PZ0}, {RG}, s{S_SL2} offen{st}")
        a(f"buffer_store_dwordx4 {vr(r.NEG, 4)}, v{r.PZ1}, {RG}, s{S_SL2} offen{st}")
        a(f"buffer_store_dwordx4 {vr(r.NEG, 4)}, v{r.PZ2}, {RG}, s{S_SL2} offen{st}")
    def side2():
        a(f"buffer_store_dwordx4 {vr(r.X, 4)}, v{r.KMA}, s[{S_KM}:{S_KM+3}], s{S_KMO} offen{kst}")
        a(f"buffer_store_dwordx4 {vr(r.NEG, 4)}, v{r.PZ0}, {RG}, s{S_SL2} offen sc1")
        a(f"buffer_store_dwordx4 {vr(r.NEG, 4)}, v{r.PZ2}, {RG}, s{S_SL3} offen{st}")
    def publish():
        if flags:
            a(f"v_mov_b32 v{T}, s{S_STEP}")
            a(f"buffer_store_dword v{T}, v{r.PUBA}, s[{S_DBG}:{S_DBG+3}], 0 offen sc1")
    if flags:
        srd(a, S_DBG, 6, 256)
        a(f"s_mov_b32 s{S_KVOK}, 0")
        a(f"s_lshl_b32 s{S_T}, s{S_X}, 3")
        a(f"s_add_u32 s{S_T}, s{S_T}, {F_PROG}")
        a(f"s_cmp_eq_u32 s{S_J}, 0")
        a(f"s_cselect_b32 s{S_T + 1}, s{S_T}, {OOB:#x}")
        a(f"v_mov_b32 v{r.PUBA}, {OOB:#x}")
        a(f"v_writelane_b32 v{r.PUBA}, s{S_T + 1}, 0")
    a(f"s_mov_b32 s{S_STEP}, 0")
    a(f"s_mov_b32 s{S_KXO}, 0")
    a(f"s_mov_b32 s{S_KMO}, 0")
    for k, s in enumerate((S_SL0, S_SL1, S_SL2, S_SL3)):
        a(f"s_mov_b32 s{s}, {k * RSLOT}")
    zero_all()
    a(f"s_cmp_lg_u32 s{S_WV}, 0")
    a(f"s_cbranch_scc1 {name}_step")
    prefetch(True)
    a.label(f"{name}_step")
    stamp(0)
    gather(a, cold, r, r.MEMLD, S_SL0, lambda i, x: [lambda t=t: smf(x, r, r.Q + 4 * t, t, i) for t in range(4)], policy)
    stamp(1)
    smf(a, r, v0_, 4, 0); smf(a, r, v1_, 5, 0)
    for t, off in ((q0, 0), (q1, 1536), (k0, 768), (k1, 2304)):
        pk(a, t, t, t + 2)
        a(f"ds_write_addtid_b32 v{t} offset:{off}")
        a(f"ds_write_addtid_b32 v{t + 1} offset:{off + 288}")
    stamp(16)
    a(f"s_cmp_eq_u32 s{S_WV}, 0")
    a("s_waitcnt lgkmcnt(0)")
    stamp(17)
    a("s_barrier")
    a(f"s_cbranch_scc1 {name}_w0")
    stamp(2)
    vrest(); vfold()
    a("s_waitcnt lgkmcnt(0)")
    a("s_barrier")
    a(f"s_cmp_eq_u32 s{S_WV}, 2")
    a(f"s_cbranch_scc1 {name}_w2")
    a(f"s_cmp_eq_u32 s{S_WV}, 3")
    a(f"s_cbranch_scc1 {name}_b4")
    for w in range(4):
        a(f"ds_read2_b64 {vr(r.R + 4 * w, 4)}, v{r.VR} offset0:{w * 128} offset1:{w * 128 + 16}") if w < 2 else \
        a(f"ds_read2_b64 {vr(r.R + 4 * w, 4)}, v{T} offset0:{(w - 2) * 128} offset1:{(w - 2) * 128 + 16}")
        if w == 0: a(f"v_add_u32 v{T}, 2048, v{r.VR}")
    a("s_waitcnt lgkmcnt(0)")
    for k in (0, 2):
        pk(a, r.R + k, r.R + k, r.R + 4 + k); pk(a, r.R + 8 + k, r.R + 8 + k, r.R + 12 + k)
    for k in (0, 2): pk(a, r.R + k, r.R + k, r.R + 8 + k)
    a(f"v_cvt_pk_bf16_f32 v{r.X}, v{r.R}, v{r.R+1}")
    a(f"v_cvt_pk_bf16_f32 v{r.X+1}, v{r.R+2}, v{r.R+3}")
    a(f"s_cmp_lg_u32 s{S_STEP}, 63")
    a(f"s_cbranch_scc1 {name}_b4")
    side1()
    a(f"s_branch {name}_done")
    a.label(f"{name}_w2")
    xreduce(); xsum()
    a(f"s_cmp_lg_u32 s{S_STEP}, 63")
    a(f"s_cbranch_scc1 {name}_b4")
    side2()
    a(f"s_branch {name}_done")
    a.label(f"{name}_w0")
    stamp(2)
    xreduce(); vrest(); stamp(18); xsum(); stamp(19)
    a(f"v_mfma_f32_16x16x32_bf16 {vr(r.S, 4)}, {vr(r.KXF, 4)}, {vr(r.X, 4)}, 0")
    a(f"v_mfma_f32_16x16x32_bf16 {vr(r.S + 4, 4)}, {vr(r.KXF + 4, 4)}, {vr(r.X, 4)}, 0")
    a(f"v_mfma_f32_16x16x32_bf16 {vr(r.S + 8, 4)}, {vr(r.X, 4)}, {vr(r.X, 4)}, 0")
    a("s_nop 5")
    a(f"buffer_store_dwordx4 {vr(r.S, 4)}, v{r.SST}, {RG}, s{S_SL0} offen{st}")
    a(f"buffer_store_dwordx4 {vr(r.S + 4, 4)}, v{r.SST}, {RG}, s{S_SL0} offen offset:512{st}")
    a(f"buffer_store_dwordx4 {vr(r.S + 8, 4)}, v{r.SST0}, {RG}, s{S_SL0} offen{st}")
    stamp(3)
    vfold()
    a(f"s_cmp_eq_u32 s{S_STEP}, 63")
    a("s_waitcnt lgkmcnt(0)")
    a("s_barrier")
    a(f"s_cbranch_scc1 {name}_done")
    stamp(20)
    for w in range(1, 4):
        a(f"ds_read2st64_b64 {vr(r.R + 4 * w, 4)}, v{r.VR} offset0:{2 * w} offset1:{2 * w + 1}")
    P = r.PS
    lp, ok = a.uid("Lps"), a.uid("Lks")
    def sloads(x):
        for c in range(4):
            x(f"buffer_load_dwordx4 {vr(P + 4 * c, 4)}, v{r.SLD}, {RG}, s{S_SL0} offen offset:{1280 * c} sc1")
            x(f"buffer_load_dword v{P + 16 + c}, v{r.SLD0}, {RG}, s{S_SL0} offen offset:{1280 * c} sc1")
    if o.get('searly'): sloads(a)
    a("s_waitcnt lgkmcnt(0)")
    for k in (0, 2):
        pk(a, r.R + 4 + k, v0_ + k, r.R + 4 + k); pk(a, r.R + 8 + k, r.R + 8 + k, r.R + 12 + k)
    for k in (0, 2): pk(a, r.R + 4 + k, r.R + 4 + k, r.R + 8 + k)
    a(f"v_cvt_pk_bf16_f32 v{r.VM}, v{r.R + 4}, v{r.R + 5}")
    a(f"v_cvt_pk_bf16_f32 v{r.VM + 4}, v{r.R + 6}, v{r.R + 7}")
    stamp(21)
    if o.get('swait', False): a("s_waitcnt vmcnt(0)")
    stamp(4)
    if not o.get('searly'): sloads(a)
    a.label(lp)
    E = r.R
    a("s_waitcnt vmcnt(4)")
    pk(a, E, P, P + 4); pk(a, E + 2, P + 2, P + 6)
    a(f"v_add_f32 v{E + 4}, v{P + 16}, v{P + 17}")
    a("s_waitcnt vmcnt(0)")
    pk(a, E + 6, P + 8, P + 12); pk(a, E + 8, P + 10, P + 14)
    a(f"v_add_f32 v{E + 5}, v{P + 18}, v{P + 19}")
    pk(a, E, E, E + 6); pk(a, E + 2, E + 2, E + 8)
    a(f"v_add_f32 v{E + 4}, v{E + 4}, v{E + 5}")
    M = E + 10
    a(f"v_maximum3_f32 v{M}, v{E}, v{E+1}, v{E+2}")
    a(f"v_maximum3_f32 v{M}, v{M}, v{E+3}, v{E+4}")
    a(f"v_cmp_u_f32 vcc, v{M}, v{M}")
    a(f"v_max_f32_dpp v{M}, v{M}, v{M} row_ror:8 row_mask:0xf bank_mask:0xf")
    a(f"v_mov_b32 v{M+1}, v{M}")
    a(f"v_permlane16_swap_b32 v{M+1}, v{M}")
    a(f"v_max_f32 v{M}, v{M}, v{M+1}")
    a(f"v_mov_b32 v{M+1}, v{M}")
    rs = a.uid("Lrs")
    a(f"s_cbranch_vccnz {rs}")
    a.label(ok)
    cold.label(rs)
    maxchk(cold, T, [P + i for i in range(20)])
    cold(f"s_cbranch_vccz {ok}")
    spin_guard(cold, ok)
    sloads(cold)
    cold(f"s_branch {lp}")
    stamp(5)
    a(f"v_permlane32_swap_b32 v{M+1}, v{M}")
    a(f"v_max_f32 v{M}, v{M}, v{M+1}")
    a(f"v_mul_f32 v{M}, s{S_CS}, v{M}")
    for k in range(5):
        a(f"v_fma_f32 v{E + k}, v{E + k}, s{S_CS}, -v{M}")
    for k in range(5):
        a(f"v_exp_f32 v{E + k}, v{E + k}")
    a(f"v_cvt_pk_bf16_f32 v{r.BX}, v{E}, v{E+1}")
    a(f"v_cvt_pk_bf16_f32 v{r.BX+1}, v{E+2}, v{E+3}")
    a(f"v_mov_b32_dpp v{E+5}, v{E+4} row_ror:8 row_mask:0xf bank_mask:0xf")
    a(f"v_mov_b32_dpp v{r.BX+2}, v{r.BX} row_ror:8 row_mask:0xf bank_mask:0xf")
    a(f"v_mov_b32_dpp v{r.BX+3}, v{r.BX+1} row_ror:8 row_mask:0xf bank_mask:0xf")
    a(f"v_cvt_pk_bf16_f32 v{r.BM}, v{E+4}, v{E+5}")
    a(f"v_add_f32 v{M}, v{E}, v{E+1}")
    a(f"v_mfma_f32_16x16x32_bf16 {vr(r.O, 4)}, {vr(r.VXF, 4)}, {vr(r.BX, 4)}, 0")
    a(f"v_add_f32 v{M+1}, v{E+2}, v{E+3}")
    a(f"v_add_f32 v{M}, v{M}, v{E+4}")
    a(f"v_mfma_f32_16x16x32_bf16 {vr(r.O + 4, 4)}, {vr(r.VXF + 4, 4)}, {vr(r.BX, 4)}, 0")
    a(f"v_add_f32 v{M}, v{M}, v{M+1}")
    a(f"v_mfma_f32_16x16x32_bf16 {vr(r.O, 4)}, {vr(r.VM, 4)}, {vr(r.BM, 4)}, {vr(r.O, 4)}")
    a("s_nop 0")
    a(f"v_add_f32_dpp v{M}, v{M}, v{M} row_ror:8 row_mask:0xf bank_mask:0xf")
    a(f"v_mov_b32 v{M+1}, v{M}")
    a(f"v_mfma_f32_16x16x32_bf16 {vr(r.O + 4, 4)}, {vr(r.VM + 4, 4)}, {vr(r.BM, 4)}, {vr(r.O + 4, 4)}")
    a("s_nop 0")
    a(f"v_permlane16_swap_b32 v{M+1}, v{M}")
    a(f"v_add_f32 v{M}, v{M}, v{M+1}")
    a(f"v_mov_b32 v{M+1}, v{M}")
    a(f"v_permlane32_swap_b32 v{M+1}, v{M}")
    a(f"v_add_f32 v{M}, v{M}, v{M+1}")
    a(f"v_rcp_f32 v{M}, v{M}")
    for k in range(0, 8, 2):
        a(f"v_pk_mul_f32 {vr(r.O + k, 2)}, {vr(r.O + k, 2)}, {vr(M, 2)} op_sel_hi:[1,0]")
    for k in range(4):
        a(f"v_cvt_pk_bf16_f32 v{r.X + k}, v{r.O + 2*k}, v{r.O + 2*k + 1}")
    a(f"buffer_store_dwordx4 {vr(r.X, 4)}, v{r.OST}, {RG}, s{S_SL0} offen{st}")
    stamp(6)
    if o.get('owait', False): a("s_waitcnt vmcnt(0)")
    a.label(f"{name}_b4")
    a(f"s_cmp_eq_u32 s{S_STEP}, 63")
    a(f"s_cbranch_scc1 {name}_done")
    a("s_barrier")
    stamp(7)
    gather(a, cold, r, r.OLD, S_SL0, lambda i, x: [lambda t=t: smf(x, r, r.WO + 4 * t, 6 + t, i) for t in range(2)], policy)
    stamp(8)
    a(f"s_add_u32 s{S_KXO}, s{S_KXO}, 262144")
    a(f"s_cmp_eq_u32 s{S_WV}, 3")
    pk(a, r.WO, r.WO, r.WO + 2); pk(a, r.WO + 2, r.WO + 4, r.WO + 6)
    a(f"s_cbranch_scc1 {name}_w3")
    a(f"ds_write_b128 v{r.WW}, {vr(r.WO, 4)}")
    stamp(23)
    a("s_waitcnt lgkmcnt(0)")
    a("s_barrier")
    stamp(9)
    zero_all()
    a(f"s_cmp_eq_u32 s{S_WV}, 1")
    a("s_barrier")
    a(f"s_cbranch_scc1 {name}_w1b")
    a(f"s_cmp_eq_u32 s{S_WV}, 2")
    a(f"s_cbranch_scc1 {name}_w2b")
    prefetch()
    a(f"s_branch {name}_b5")
    a.label(f"{name}_w1b")
    side1()
    a(f"s_branch {name}_b5")
    a.label(f"{name}_w2b")
    side2(); publish()
    a(f"s_branch {name}_b5")
    a.label(f"{name}_w3")
    a("s_barrier")
    stamp(9)
    for w in range(3):
        a(f"ds_read_b128 {vr(r.R + 4 * w, 4)}, v{r.WR} offset:{w * 1024}")
    a("s_waitcnt lgkmcnt(1)")
    for k in (0, 2): pk(a, r.R + k, r.R + k, r.R + 4 + k)
    a("s_waitcnt lgkmcnt(0)")
    for k in (0, 2): pk(a, r.R + 8 + k, r.R + 8 + k, r.WO + k)
    for k in (0, 2): pk(a, r.R + k, r.R + k, r.R + 8 + k)
    a(f"buffer_store_dwordx4 {vr(r.R, 4)}, v{r.PST}, {RG}, s{S_SL0} offen sc1")
    stamp(10)
    a("s_barrier")
    def ploads(x, b):
        for c, v in enumerate((r.PL1, r.PL2, r.PL3)):
            x(f"buffer_load_dwordx4 {vr(b + 4 * c, 4)}, v{v}, {RG}, s{S_SL0} offen sc1")
    E = r.R + 4
    def psum(x, b, n_after):
        x(f"s_waitcnt vmcnt({n_after + 2})")
        pk(x, E, r.R, b); pk(x, E + 2, r.R + 2, b + 2)
        x(f"s_waitcnt vmcnt({n_after})")
        pk(x, E + 4, b + 4, b + 8); pk(x, E + 6, b + 6, b + 10)
        pk(x, E, E, E + 4); pk(x, E + 2, E + 2, E + 6)
        x(f"v_maximum3_f32 v{E + 8}, v{E}, v{E+1}, v{E+2}")
        x(f"v_cmp_u_f32 vcc, v{E + 8}, v{E+3}")
        x(f"v_cvt_pk_bf16_f32 v{r.X}, v{E}, v{E+2}")
        x(f"v_cvt_pk_bf16_f32 v{r.X+1}, v{E+1}, v{E+3}")
    ok = a.uid("Lkp")
    pp = o.get('pp', 1)
    if pp == 1:
        zero_all()
        if o.get('pwait', True): a("s_waitcnt vmcnt(0)")
        if o.get('pdelay'): a(f"s_sleep {o['pdelay']}")
        stamp(11)
        lp, rp = a.uid("Lpp"), a.uid("Lrp")
        ploads(a, P)
        a.label(lp)
        psum(a, P, 0)
        a(f"s_cbranch_vccnz {rp}")
        cold.label(rp)
        maxchk(cold, T, [P + i for i in range(12)])
        cold(f"s_cbranch_vccz {ok}")
        spin_guard(cold, ok)
        ploads(cold, P)
        cold(f"s_branch {lp}")
    else:
        if o.get('pdelay'): a(f"s_sleep {o['pdelay']}")
        stamp(11)
        ploads(a, P)
        zero_all()
        if o.get('pdelay2'): a(f"s_sleep {o['pdelay2']}")
        ploads(a, P + 12)
        la, lb, ra, rb = a.uid("Lpa"), a.uid("Lpb"), a.uid("Lra"), a.uid("Lrb")
        a.label(la)
        psum(a, P, 3)
        a(f"s_cbranch_vccnz {ra}")
        cold.label(ra)
        maxchk(cold, T, [P + i for i in range(12)])
        cold(f"s_cbranch_vccz {ok}")
        spin_guard(cold, ok)
        ploads(cold, P)
        psum(cold, P + 12, 3)
        cold(f"s_cbranch_vccz {ok}")
        maxchk(cold, T, [P + 12 + i for i in range(12)])
        cold(f"s_cbranch_vccz {ok}")
        ploads(cold, P + 12)
        cold(f"s_branch {la}")
    a.label(ok)
    a(f"buffer_store_dword v{r.X}, v{r.MST}, {RG}, s{S_SL1} offen{st}")
    a(f"buffer_store_dword v{r.X + 1}, v{r.MST}, {RG}, s{S_SL1} offen offset:16{st}")
    stamp(12)
    if o.get('mwait', False): a("s_waitcnt vmcnt(0)")
    a.label(f"{name}_b5")
    a(f"s_mov_b32 s{S_T}, s{S_SL0}")
    a(f"s_mov_b32 s{S_SL0}, s{S_SL1}")
    a(f"s_mov_b32 s{S_SL1}, s{S_SL2}")
    a(f"s_mov_b32 s{S_SL2}, s{S_SL3}")
    a(f"s_mov_b32 s{S_SL3}, s{S_T}")
    a(f"s_add_u32 s{S_KMO}, s{S_KMO}, 65536")
    a(f"s_add_u32 s{S_STEP}, s{S_STEP}, 1")
    if stamps:
        stamp(13)
        a("s_waitcnt lgkmcnt(0)")
        srd(a, 96, 4, 0x1000000, off_imm=STAMPS)
        a(f"s_lshl_b32 s{S_T}, s{S_X}, 5")
        a(f"s_add_u32 s{S_T}, s{S_T}, s{S_J}")
        a(f"s_lshl_b32 s{S_T}, s{S_T}, 2")
        a(f"s_add_u32 s{S_T}, s{S_T}, s{S_WV}")
        a(f"s_lshl_b32 s{S_T}, s{S_T}, 6")
        a(f"s_add_u32 s{S_T}, s{S_T}, s{S_STEP}")
        a(f"s_sub_u32 s{S_T}, s{S_T}, 1")
        a(f"s_lshl_b32 s{S_T}, s{S_T}, 7")
        ks = o.get('w3s', range(28))
        for k in range(28):
            a(f"v_writelane_b32 v{T}, s{S_ST + 2*k}, {k}")
        a(f"v_writelane_b32 v{T}, s{S_SPIN}, 31")
        a(f"v_lshlrev_b32 v{T+1}, 2, v{r.L}")
        a(f"v_mov_b32 v{T+2}, {OOB:#x}")
        a(f"v_cmp_gt_u32 vcc, 32, v{r.L}")
        a(f"v_cndmask_b32 v{T+1}, v{T+2}, v{T+1}, vcc")
        a(f"buffer_store_dword v{T}, v{T+1}, s[96:99], s{S_T} offen")
    a("s_barrier")
    a(f"s_branch {name}_step")
    a.lines += cold.lines
    a.label(f"{name}_done")
    a("s_waitcnt vmcnt(0)")
    if flags:
        a("s_barrier")
        a(f"s_lshl_b32 s{S_T}, s{S_X}, 3")
        a(f"s_add_u32 s{S_T}, s{S_T}, {F_PROG + 4}")
        a(f"s_cmp_eq_u32 s{S_WV}, 0")
        a(f"s_cselect_b32 s{S_T}, s{S_T}, {OOB:#x}")
        a(f"v_mov_b32 v{r.PUBA}, {OOB:#x}")
        a(f"v_writelane_b32 v{r.PUBA}, s{S_T}, 0")
        a(f"v_mov_b32 v{T}, 1")
        a(f"buffer_atomic_add v{T}, v{r.PUBA}, s[{S_DBG}:{S_DBG+3}], 0 offen sc1")

def roles(a, name, exit_label, chain_xcc_mask=0x55, calib=True):
    a(f"s_load_dwordx2 s[6:7], s[0:1], {KA['dbg']}")
    a(f"s_load_dwordx2 s[4:5], s[0:1], {KA['ws']}")
    a("s_getreg_b32 s37, hwreg(HW_REG_XCC_ID)")
    a("s_and_b32 s37, s37, 7")
    a("s_lshl_b32 s36, s37, 3")
    a("s_lshl_b64 s[38:39], 1, s36")
    a("v_mov_b32 v2, s38")
    a("v_mov_b32 v3, s39")
    a("v_mov_b32 v1, 0")
    a("s_waitcnt lgkmcnt(0)")
    srd(a, 8, 6, 256)
    a("v_cmp_eq_u32 vcc, 0, v0")
    a("s_and_saveexec_b64 s[40:41], vcc")
    a(f"s_cbranch_execz {name}_r1")
    a("buffer_atomic_add_x2 v[2:3], v1, s[8:11], 0 offen sc0 sc1")
    a("s_waitcnt vmcnt(0)")
    a("ds_write_b64 v1, v[2:3]")
    a("s_waitcnt lgkmcnt(0)")
    a.label(f"{name}_r1")
    a("s_mov_b64 exec, s[40:41]")
    a("s_barrier")
    a("ds_read_b64 v[2:3], v1")
    a("s_waitcnt lgkmcnt(0)")
    a("s_barrier")
    a("v_sad_u8 v4, v2, 0, 0")
    a("v_sad_u8 v4, v3, 0, v4")
    a("v_readfirstlane_b32 s40, v2")
    a("v_readfirstlane_b32 s41, v3")
    a("v_readfirstlane_b32 s35, v4")
    a("s_nop 3")
    a("s_cmp_ge_u32 s35, 256")
    a(f"s_cbranch_scc1 {exit_label}")
    a("s_add_u32 s42, s40, s38")
    a("s_addc_u32 s43, s41, s39")
    a("s_lshr_b64 s[38:39], s[40:41], s36")
    a("s_and_b32 s38, s38, 0xff")
    if calib:
        a("s_cmp_lg_u32 s35, 0")
        a(f"s_cbranch_scc1 {name}_r6")
        srd(a, 12, 4, RING_BYTES, off_imm=RING)
        a("s_mov_b32 s44, -1")
        a("s_mov_b32 s45, -1")
        a("v_mov_b32 v5, 8192")
        for rep in range(4):
            for k in range(2):
                a("s_memtime s[46:47]")
                a("s_waitcnt lgkmcnt(0)")
                a(f"buffer_load_dword v2, v{1 + 4 * k}, s[12:15], 0 offen offset:{128 * rep} sc1")
                a("s_waitcnt vmcnt(0)")
                a("s_memtime s[48:49]")
                a("s_waitcnt lgkmcnt(0)")
                a("s_sub_u32 s46, s48, s46")
                a(f"s_min_u32 s{44 + k}, s{44 + k}, s46")
        a("s_cmp_lt_u32 s45, s44")
        a("s_cselect_b32 s44, 1, 0")
        a("s_lshr_b32 s45, s37, 2")
        a(f"s_xor_b32 s44, s44, s45")
        if chain_xcc_mask == 0xf0: a("s_xor_b32 s44, s44, 1")
        a("s_add_u32 s44, s44, 1")
        a("v_mov_b32 v2, s44")
        a("buffer_store_dword v2, v1, s[8:11], 0 offen offset:12 sc1")
        a.label(f"{name}_r6")
    a("s_cmp_lg_u32 s35, 255")
    a(f"s_cbranch_scc1 {name}_r2")
    a("s_xor_b32 s39, s42, 0x20202020")
    a("s_xor_b32 s3, s43, 0x20202020")
    a("s_or_b32 s39, s39, s3")
    a("s_cselect_b32 s3, 2, 1")
    a("v_mov_b32 v2, s3")
    a("buffer_store_dword v2, v1, s[8:11], 0 offen offset:8 sc1")
    a.label(f"{name}_r2")
    a("s_mov_b32 s39, 0")
    a.label(f"{name}_r3")
    a("buffer_load_dwordx2 v[2:3], v1, s[8:11], 0 offen offset:8 sc1")
    a("s_waitcnt vmcnt(0)")
    a("v_readfirstlane_b32 s3, v2")
    a("v_readfirstlane_b32 s33, v3")
    a("s_add_u32 s39, s39, 1")
    a(f"s_cmp_ge_u32 s39, {SPIN_MAX}")
    a(f"s_cbranch_scc1 {exit_label}")
    a("s_cmp_eq_u32 s3, 0")
    a(f"s_cbranch_scc1 {name}_r3")
    if calib:
        a("s_cmp_eq_u32 s33, 0")
        a(f"s_cbranch_scc1 {name}_r3")
        a("s_sub_u32 s33, s33, 1")
        a("s_lshl_b32 s33, s33, 13")
    a("s_cmp_eq_u32 s3, 1")
    a(f"s_cbranch_scc1 {name}_r4")
    a("s_lshr_b32 s25, s35, 5")
    a("s_and_b32 s26, s35, 31")
    a("s_cmp_lt_u32 s35, 128")
    a(f"s_branch {name}_r5")
    a.label(f"{name}_r4")
    a(f"s_lshl_b32 s39, 1, s37")
    a(f"s_sub_u32 s25, s39, 1")
    a(f"s_and_b32 s25, s25, {chain_xcc_mask}")
    a("s_bcnt1_i32_b32 s25, s25")
    a("s_mov_b32 s26, s38")
    a(f"s_and_b32 s39, s39, {chain_xcc_mask}")
    a("s_cselect_b32 s39, s38, 99")
    a("s_cmp_lt_u32 s39, 32")
    a.label(f"{name}_r5")

def gen_chain_test(a, name, stamps=True, force_slow=False, o={}):
    r = CR()
    kernel_header(a, name)
    roles(a, name, f"{name}_end", o.get('mask', 0x55))
    a(f"s_cbranch_scc0 {name}_end")
    if 'pol' in o: a(f"s_xor_b32 s33, s33, {o.get('pol', 0) * 8192}")
    chain_setup(a, r, 33)
    chain_weights(a, r)
    a("s_barrier")
    if not force_slow:
        a("s_cmp_eq_u32 s3, 2")
        a(f"s_cbranch_scc1 {name}_end")
        chain_loop(a, r, name + "_f", True, stamps, o)
    else:
        chain_loop(a, r, name + "_s", False, stamps, o)
    a.label(f"{name}_end")
    a("s_endpgm")
    accum = (r.end + 3) // 4 * 4
    return dict(vgpr=accum + 256, accum=accum, lds=CH_LDS, grid=256, block=256)
```

```python
from asmlib import *
from layout import *
import struct, math
from gemm import GemmCfg, GemmRegs, frag_reads, mfmas, emit_kstep

def f2u(x): return struct.unpack("<I", struct.pack("<f", x))[0]

S_SRD_A, S_SRD_B, S_SRD_O = 8, 12, 16
S_AOFF, S_BOFF = 20, 21
S_M0A, S_M0B = 22, 23
S_CNT = 24
S_WAVE = 25
S_T0, S_T1 = 26, 27
S_BINC = 28
S_RTS, S_LDB = 29, 30
S_NIT = 31
S_AUX = 32
S_AUX2 = 36

def shape(WM, WN, TM, TN, BKS, NS, swap, vbase=1, ntail=None):
    return GemmCfg(WM, WN, TM, TN, BKS, NS, 16 * BKS * NS, 0, 0, swap, vbase=vbase, ntail=ntail)

def wave_setup(a, r):
    a(f"v_and_b32 v{r.lane}, 63, v0")
    a(f"v_lshrrev_b32 v{r.tmp}, 6, v0")
    a(f"v_readfirstlane_b32 s{S_WAVE}, v{r.tmp}")

def static_setup(a, c, r):
    L, T = r.lane, r.tmp
    nrq = 4 * c.BKS
    a(f"s_mul_i32 s{S_M0A}, s{S_WAVE}, {c.nAw * 1024}")
    a(f"s_mul_i32 s{S_M0B}, s{S_WAVE}, {c.nBw * 1024}")
    a(f"s_add_u32 s{S_M0B}, s{S_M0B}, {c.Abytes}")
    a(f"s_and_b32 s{S_T0}, s{S_WAVE}, {c.WM-1}")
    a(f"s_mul_i32 s{S_T0}, s{S_T0}, {c.TM * c.BKS * 1024}")
    a(f"v_lshl_add_u32 v{r.vX[0]}, v{L}, 4, s{S_T0}")
    for w in range(1, len(r.winbase)):
        a(f"v_add_u32 v{r.vX[w]}, {r.winbase[w]}, v{r.vX[0]}")
    a(f"v_lshrrev_b32 v{T}, 5, v{L}")
    a(f"v_lshlrev_b32 v{T}, 10, v{T}")
    a(f"v_bfe_u32 v{T+1}, v{L}, 4, 1")
    a(f"v_lshl_add_u32 v{T}, v{T+1}, 5, v{T}")
    a(f"v_and_b32 v{T+1}, 3, v{L}")
    a(f"v_lshl_add_u32 v{T}, v{T+1}, 3, v{T}")
    a(f"v_bfe_u32 v{T+1}, v{L}, 2, 2")
    a(f"v_lshl_add_u32 v{T}, v{T+1}, 8, v{T}")
    shm = c.WM.bit_length() - 1
    for tn in range(c.TN):
        a(f"s_lshr_b32 s{S_T0}, s{S_WAVE}, {shm}")
        a(f"s_mul_i32 s{S_T0}, s{S_T0}, {c.TN}")
        a(f"s_add_u32 s{S_T0}, s{S_T0}, {tn}")
        a(f"s_and_b32 s{S_T1}, s{S_T0}, 3")
        a(f"v_xor_b32 v{T+2}, s{S_T1}, v{T+1}")
        a(f"v_lshl_add_u32 v{T+2}, v{T+2}, 6, v{T}")
        a(f"s_lshr_b32 s{S_T0}, s{S_T0}, 2")
        a(f"s_mul_i32 s{S_T0}, s{S_T0}, {nrq * 1024}")
        a(f"v_add_u32 v{r.vW[0][tn]}, s{S_T0}, v{T+2}")
        for w in range(1, len(r.winbase)):
            a(f"v_add_u32 v{r.vW[w][tn]}, {r.winbase[w]}, v{r.vW[0][tn]}")

def task_setup(a, c, r):
    L, T = r.lane, r.tmp
    sh = c.BKS.bit_length() - 1
    for i in range(c.nAw):
        a(f"s_mul_i32 s{S_T0}, s{S_WAVE}, {c.nAw}")
        a(f"s_add_u32 s{S_T0}, s{S_T0}, {i}")
        a(f"s_lshr_b32 s{S_T1}, s{S_T0}, {sh}")
        a(f"s_mul_i32 s{S_T1}, s{S_T1}, s{S_RTS}")
        a(f"s_and_b32 s{S_T0}, s{S_T0}, {c.BKS-1}")
        a(f"s_lshl_b32 s{S_T0}, s{S_T0}, 10")
        a(f"s_add_u32 s{S_T0}, s{S_T0}, s{S_T1}")
        if i % 4: a(f"s_sub_u32 s{S_T0}, s{S_T0}, {(i % 4) * 1024}")
        a(f"v_lshl_add_u32 v{r.vA[i]}, v{L}, 4, s{S_T0}")
    a(f"v_lshrrev_b32 v{T}, 4, v{L}")
    a(f"v_lshlrev_b32 v{T+1}, 2, v{T}")
    a(f"v_and_b32 v{T+2}, 15, v{L}")
    a(f"v_xor_b32 v{T+2}, v{T+2}, v{T+1}")
    a(f"v_lshlrev_b32 v{T+2}, 4, v{T+2}")
    a(f"v_mul_lo_u32 v{T}, v{T}, s{S_LDB}")
    a(f"v_add_u32 v{T}, v{T}, v{T+2}")
    nrq = 4 * c.BKS
    shq = nrq.bit_length() - 1
    for i in range(c.nBw):
        a(f"s_mul_i32 s{S_T0}, s{S_WAVE}, {c.nBw}")
        a(f"s_add_u32 s{S_T0}, s{S_T0}, {i}")
        a(f"s_lshr_b32 s{S_T1}, s{S_T0}, {shq}")
        a(f"s_lshl_b32 s{S_T1}, s{S_T1}, 8")
        a(f"s_and_b32 s{S_T0}, s{S_T0}, {nrq-1}")
        a(f"s_lshl_b32 s{S_T0}, s{S_T0}, 2")
        a(f"s_mul_i32 s{S_T0}, s{S_T0}, s{S_LDB}")
        a(f"s_add_u32 s{S_T0}, s{S_T0}, s{S_T1}")
        if i % 4: a(f"s_sub_u32 s{S_T0}, s{S_T0}, {(i % 4) * 1024}")
        a(f"v_add_u32 v{r.vB[i]}, s{S_T0}, v{T}")
    a(f"s_mul_i32 s{S_BINC}, s{S_LDB}, {c.BK}")
    a(f"s_mov_b32 s{S_AOFF}, 0")
    a(f"s_mov_b32 s{S_BOFF}, 0")

def dma_group(c, r, slot):
    out = []
    for i in range(c.nAw):
        ins = []
        if i % 4 == 0:
            ins.append(f"s_add_u32 m0, s{S_M0A}, {slot * c.SLOT + (i // 4) * 4096}")
            ins.append("s_nop 0")
        o = (i % 4) * 1024
        ins.append(f"buffer_load_dwordx4 v{r.vA[i]}, s[{S_SRD_A}:{S_SRD_A+3}], s{S_AOFF} offen" + (f" offset:{o}" if o else "") + " lds")
        if i == c.nAw - 1:
            ins.append(f"s_add_u32 s{S_AOFF}, s{S_AOFF}, {c.BKS * 1024}")
        out.append(ins)
    for i in range(c.nBw):
        ins = []
        if i % 4 == 0:
            ins.append(f"s_add_u32 m0, s{S_M0B}, {slot * c.SLOT + (i // 4) * 4096}")
            ins.append("s_nop 0")
        o = (i % 4) * 1024
        ins.append(f"buffer_load_dwordx4 v{r.vB[i]}, s[{S_SRD_B}:{S_SRD_B+3}], s{S_BOFF} offen" + (f" offset:{o}" if o else "") + " lds")
        if i == c.nBw - 1:
            ins.append(f"s_add_u32 s{S_BOFF}, s{S_BOFF}, s{S_BINC}")
        out.append(ins)
    return out

def emit_stage(a, c, r, slot, head, tail, vm, has_next):
    nh = len(head)
    per = (nh + max(c.BKS - 2, 0)) // max(c.BKS - 1, 1)
    for ks in range(c.BKS):
        fset = ks & 1
        mf = mfmas(c, r, fset)
        if ks < c.BKS - 1:
            d = head[ks * per:(ks + 1) * per]
            emit_kstep(a, mf, [], frag_reads(c, r, slot, ks + 1, fset ^ 1), d)
        else:
            if has_next:
                pre = [f"s_waitcnt vmcnt({vm})", "s_barrier"]
                rd = frag_reads(c, r, (slot + 1) % c.NS, 0, fset ^ 1)
            else:
                pre, rd = [], []
            emit_kstep(a, mf, pre, rd, tail)

def n_prologue(c):
    return (c.NS - 1) * c.ND + c.ntail

def gemm_prologue(a, c, r):
    for s in range(c.NS - 1):
        for d in dma_group(c, r, s):
            for x in d: a(x)
    for d in dma_group(c, r, c.NS - 1)[:c.ntail]:
        for x in d: a(x)

def acc_zero(a, c):
    for i in range(16 * c.TM * c.TN):
        a(f"v_accvgpr_write_b32 a{i}, 0")

def bias_load(a, c, r, srd, soff):
    T = r.tmp
    shm = c.WM.bit_length() - 1
    a(f"s_lshr_b32 s{S_T1}, s{S_WAVE}, {shm}")
    a(f"s_mul_i32 s{S_T1}, s{S_T1}, {c.TN * 64}")
    a(f"v_lshrrev_b32 v{T}, 5, v{r.lane}")
    a(f"v_lshl_add_u32 v{T}, v{T}, 3, s{S_T1}")
    b = r.fX[0][0]
    for tn in range(c.TN):
        for q in range(4):
            a(f"buffer_load_dwordx2 {vr(b + tn * 8 + q * 2, 2)}, v{T}, s[{srd}:{srd+3}], s{soff} offen offset:{tn * 64 + q * 16}")

def acc_bias(a, c, r):
    b = r.fX[0][0]
    t = b + 8 * c.TN
    for tn in range(c.TN):
        for k in range(8):
            a(f"v_lshlrev_b32 v{t}, 16, v{b + tn * 8 + k}")
            a(f"v_and_b32 v{t + 1}, 0xffff0000, v{b + tn * 8 + k}")
            for tm in range(c.TM):
                acc = (tm * c.TN + tn) * 16 + 2 * k
                a(f"v_accvgpr_write_b32 a{acc}, v{t}")
                a(f"v_accvgpr_write_b32 a{acc + 1}, v{t + 1}")
            t ^= 2

def gemm_loop(a, c, r, younger=0):
    nt = c.ntail
    a(f"s_waitcnt vmcnt({min(63, (c.NS - 2) * c.ND + nt + younger)})")
    a("s_barrier")
    for x in frag_reads(c, r, 0, 0, 0):
        a(x)
    a(f"s_mov_b32 s{S_CNT}, s{S_NIT}")
    lp = a.uid("Lgemm")
    a.label(lp)
    for s in range(c.NS):
        head = dma_group(c, r, (s - 1) % c.NS)[nt:]
        tail = dma_group(c, r, s)[:nt]
        emit_stage(a, c, r, s, head, tail, (c.NS - 2) * c.ND, True)
    a(f"s_sub_u32 s{S_CNT}, s{S_CNT}, 1")
    a(f"s_cmp_lg_u32 s{S_CNT}, 0")
    a(f"s_cbranch_scc1 {lp}")
    for s in range(c.NS):
        head = dma_group(c, r, (s - 1) % c.NS)[nt:] if s == 0 else []
        emit_stage(a, c, r, s, head, [], max(c.NS - 2 - s, 0) * c.ND, s < c.NS - 1)

def out_lane_addr(a, c, r, rts, dst):
    shm = c.WM.bit_length() - 1
    a(f"s_and_b32 s{S_T0}, s{S_WAVE}, {c.WM-1}")
    a(f"s_mul_i32 s{S_T0}, s{S_T0}, {c.TM * rts}")
    a(f"s_lshr_b32 s{S_T1}, s{S_WAVE}, {shm}")
    a(f"s_mul_i32 s{S_T1}, s{S_T1}, {c.TN * 2048}")
    a(f"s_add_u32 s{S_T0}, s{S_T0}, s{S_T1}")
    a(f"v_lshl_add_u32 v{dst}, v{r.lane}, 4, s{S_T0}")

GC0 = -2 * math.log2(math.e) * math.sqrt(2 / math.pi)
GC1 = GC0 * 0.044715

def epi_frag(a, c, r, rts, act=None, sc=""):
    T = r.tmp
    out_lane_addr(a, c, r, rts, T)
    vt = r.fX[0][0]
    if act == 'gelu':
        a(f"s_mov_b32 s40, {f2u(GC1):#x}"); a(f"s_mov_b32 s41, s40")
        a(f"s_mov_b32 s42, {f2u(GC0):#x}"); a(f"s_mov_b32 s43, s42")
    if act == 'silu':
        a(f"s_mov_b32 s40, {f2u(-math.log2(math.e)):#x}"); a(f"s_mov_b32 s41, s40")
    k = 0
    for tm in range(c.TM):
        for tn in range(c.TN):
            acc = (tm * c.TN + tn) * 16
            b = vt + (k % 2) * 8; x = vt + 16; z = vt + 32; k += 1
            a(f"s_mov_b32 s{S_T0}, {tm * rts + tn * 2048}")
            for i in range(16):
                a(f"v_accvgpr_read_b32 v{x + i}, a{acc + i}")
            if act == 'gelu':
                for i in range(0, 16, 2): a(f"v_pk_mul_f32 {vr(z + i, 2)}, {vr(x + i, 2)}, {vr(x + i, 2)}")
                a(f"v_mov_b32 v{T+1}, s42")
                for i in range(0, 16, 2): a(f"v_pk_fma_f32 {vr(z + i, 2)}, {vr(z + i, 2)}, s[40:41], {vr(z + 16, 2)}") if False else \
                    a(f"v_pk_fma_f32 {vr(z + i, 2)}, {vr(z + i, 2)}, s[40:41], {vr(T + 1 - ((T + 1) & 1), 2)} op_sel:[0,0,{(T + 1) & 1}] op_sel_hi:[1,1,{(T + 1) & 1}]")
                for i in range(0, 16, 2): a(f"v_pk_mul_f32 {vr(z + i, 2)}, {vr(z + i, 2)}, {vr(x + i, 2)}")
            if act == 'silu':
                for i in range(0, 16, 2): a(f"v_pk_mul_f32 {vr(z + i, 2)}, {vr(x + i, 2)}, s[40:41]")
            if act:
                for i in range(16): a(f"v_exp_f32 v{z + i}, v{z + i}")
                for i in range(0, 16, 2): a(f"v_pk_add_f32 {vr(z + i, 2)}, {vr(z + i, 2)}, 1.0 op_sel_hi:[1,0]")
                for i in range(16): a(f"v_rcp_f32 v{z + i}, v{z + i}")
                for i in range(0, 16, 2): a(f"v_pk_mul_f32 {vr(x + i, 2)}, {vr(x + i, 2)}, {vr(z + i, 2)}")
            for i in range(8):
                a(f"v_cvt_pk_bf16_f32 v{b + i}, v{x + 2*i}, v{x + 1 + 2*i}")
            a(f"buffer_store_dwordx4 {vr(b, 4)}, v{T}, s[{S_SRD_O}:{S_SRD_O+3}], s{S_T0} offen{sc}")
            a(f"buffer_store_dwordx4 {vr(b + 4, 4)}, v{T}, s[{S_SRD_O}:{S_SRD_O+3}], s{S_T0} offen offset:1024{sc}")

def final_addr(a, c, r, vg, vo):
    out_lane_addr(a, c, r, 65536, vg)
    shm = c.WM.bit_length() - 1
    a(f"s_and_b32 s{S_T0}, s{S_WAVE}, {c.WM-1}")
    a(f"s_mul_i32 s{S_T0}, s{S_T0}, {c.TM * 65536}")
    a(f"s_lshr_b32 s{S_T1}, s{S_WAVE}, {shm}")
    a(f"s_mul_i32 s{S_T1}, s{S_T1}, {c.TN * 64}")
    a(f"s_add_u32 s{S_T0}, s{S_T0}, s{S_T1}")
    a(f"v_and_b32 v{r.tmp}, 31, v{r.lane}")
    a(f"v_lshl_add_u32 v{vo}, v{r.tmp}, 11, s{S_T0}")
    a(f"v_lshrrev_b32 v{r.tmp}, 5, v{r.lane}")
    a(f"v_lshl_add_u32 v{vo}, v{r.tmp}, 4, v{vo}")

def epi_final(a, c, r, vb, depth=2):
    vg, vo = vb, vb + 1
    buf = (vb + 2 + 3) // 4 * 4
    w = buf + 16 * depth
    final_addr(a, c, r, vg, vo)
    tiles = [(tm, tn) for tm in range(c.TM) for tn in range(c.TN)]
    def ld(k):
        tm, tn = tiles[k]; b = buf + 16 * (k % depth)
        a(f"s_mov_b32 s{S_T0}, {tm * 65536 + tn * 2048}")
        a(f"s_mov_b32 s{S_T1}, {tm * 65536}")
        a(f"buffer_load_dwordx4 {vr(b, 4)}, v{vg}, s[{S_AUX}:{S_AUX+3}], s{S_T0} offen")
        a(f"buffer_load_dwordx4 {vr(b + 4, 4)}, v{vg}, s[{S_AUX}:{S_AUX+3}], s{S_T0} offen offset:1024")
        a(f"buffer_load_dwordx4 {vr(b + 8, 4)}, v{vo}, s[{S_AUX2}:{S_AUX2+3}], s{S_T1} offen offset:{tn * 64}")
        a(f"buffer_load_dwordx4 {vr(b + 12, 4)}, v{vo}, s[{S_AUX2}:{S_AUX2+3}], s{S_T1} offen offset:{tn * 64 + 32}")
    n = len(tiles)
    for k in range(min(depth, n)): ld(k)
    for k, (tm, tn) in enumerate(tiles):
        b = buf + 16 * (k % depth); acc = (tm * c.TN + tn) * 16
        s_, g_, o_ = w, w + 16, w + 32
        for i in range(16): a(f"v_accvgpr_read_b32 v{s_ + i}, a{acc + i}")
        y = 0
        for j in range(k + 1, min(k + depth, n)): y += 4
        for j in range(max(0, k - depth + 1), k): y += 2
        a(f"s_waitcnt vmcnt({y})")
        for q in range(2):
            a(f"v_permlane32_swap_b32 v{b + 8 + 4*q}, v{b + 10 + 4*q}")
            a(f"v_permlane32_swap_b32 v{b + 9 + 4*q}, v{b + 11 + 4*q}")
        for i in range(8):
            a(f"v_lshlrev_b32 v{g_ + 2*i}, 16, v{b + i}")
            a(f"v_and_b32 v{g_ + 2*i + 1}, 0xffff0000, v{b + i}")
        for i in range(8):
            t = b + 2 * (i % 4)
            a(f"v_lshlrev_b32 v{t}, 16, v{b + 8 + i}")
            a(f"v_and_b32 v{t + 1}, 0xffff0000, v{b + 8 + i}")
            a(f"v_pk_fma_f32 {vr(s_ + 2*i, 2)}, {vr(s_ + 2*i, 2)}, {vr(g_ + 2*i, 2)}, {vr(t, 2)}")
        for i in range(8):
            a(f"v_cvt_pk_bf16_f32 v{o_ + i}, v{s_ + 2*i}, v{s_ + 2*i + 1}")
        for q in range(2):
            a(f"v_permlane32_swap_b32 v{o_ + 4*q}, v{o_ + 2 + 4*q}")
            a(f"v_permlane32_swap_b32 v{o_ + 1 + 4*q}, v{o_ + 3 + 4*q}")
        a(f"s_mov_b32 s{S_T1}, {tm * 65536}")
        a(f"buffer_store_dwordx4 {vr(o_, 4)}, v{vo}, s[{S_SRD_O}:{S_SRD_O+3}], s{S_T1} offen offset:{tn * 64}")
        a(f"buffer_store_dwordx4 {vr(o_ + 4, 4)}, v{vo}, s[{S_SRD_O}:{S_SRD_O+3}], s{S_T1} offen offset:{tn * 64 + 32}")
        if k + depth < n: ld(k + depth)
    return w + 40

S_MASK = 40
S_CS = 72
S_KOFF, S_MOFF = 73, 74
def attn_masks(a, r):
    T = r.tmp
    a(f"v_and_b32 v{T}, 31, v{r.lane}")
    a(f"v_lshrrev_b32 v{T+1}, 5, v{r.lane}")
    a(f"v_lshlrev_b32 v{T+1}, 2, v{T+1}")
    a(f"v_sub_u32 v{T}, v{T}, v{T+1}")
    for i in range(16):
        a(f"v_cmp_le_i32 s[{S_MASK + 2*i}:{S_MASK + 2*i + 1}], {8 * (i >> 2) + (i & 3)}, v{T}")
    a(f"s_mov_b32 s{S_CS}, {f2u(128 ** -0.5 * math.log2(math.e)):#x}")

def epi_attn(a, c, r, sc="", dep=None):
    assert c.TM == 4 and c.TN == 4
    T = r.tmp
    QB = 24; S = QB + 128; SM = S + 16; O = SM + 16; X = O + 32
    vK, vKM, vVM, NEG, M = X, X + 1, X + 2, X + 3, X + 4
    OB = X + 8
    assert r.fX[0][0] >= QB and OB + 16 <= 248
    cold = Asm()
    out_lane_addr(a, c, r, 262144, vK)
    shm = c.WM.bit_length() - 1
    a(f"s_and_b32 s{S_T0}, s{S_WAVE}, {c.WM-1}")
    a(f"s_mul_i32 s{S_T0}, s{S_T0}, {c.TM * 65536}")
    a(f"s_lshr_b32 s{S_T1}, s{S_WAVE}, {shm}")
    a(f"s_mul_i32 s{S_T1}, s{S_T1}, {c.TN * 512}")
    a(f"s_add_u32 s{S_T0}, s{S_T0}, s{S_T1}")
    a(f"v_lshl_add_u32 v{vVM}, v{r.lane}, 3, s{S_T0}")
    a(f"v_add_u32 v{vVM}, {VM - KM}, v{vVM}")
    a(f"v_and_b32 v{T}, 31, v{r.lane}")
    a(f"v_lshrrev_b32 v{T+1}, 5, v{r.lane}")
    a(f"v_lshl_add_u32 v{T+1}, v{T+1}, 3, v{T}")
    a(f"v_lshl_add_u32 v{vKM}, v{T+1}, 4, s{S_T0}")
    a(f"v_mov_b32 v{T+1}, 0x40000000")
    a(f"v_cmp_gt_u32 vcc, 8, v{T}")
    a(f"v_cndmask_b32 v{vKM}, v{T+1}, v{vKM}, vcc")
    a(f"v_mov_b32 v{NEG}, {f2u(-1e9 * 128 ** 0.5):#x}")
    def qconv(p):
        for cc in range(4):
            acc = (p * 4 + cc) * 16
            for i in range(16): a(f"v_accvgpr_read_b32 v{O + i}, a{acc + i}")
            for i in range(8): a(f"v_cvt_pk_bf16_f32 v{QB + 32 * p + 8 * cc + i}, v{O + 2*i}, v{O + 2*i + 1}")
    def base(p): return 128 * (p & 1)
    def xloads(p):
        A = base(p)
        a(f"s_mov_b32 s{S_KOFF}, {p * 262144}")
        for k in range(8):
            if k == 4: a(f"s_add_u32 s{S_KOFF}, s{S_KOFF}, 4096")
            a(f"buffer_load_dwordx4 {ar(A + 4 * k, 4)}, v{vK}, s[{S_AUX}:{S_AUX+3}], s{S_KOFF} offen offset:{(k % 4) * 1024}")
        a(f"s_add_u32 s{S_KOFF}, s{S_KOFF}, {VX - KX - 4096}")
        for k in range(8):
            if k == 4: a(f"s_add_u32 s{S_KOFF}, s{S_KOFF}, 4096")
            a(f"buffer_load_dwordx4 {ar(A + 64 + 4 * k, 4)}, v{vK}, s[{S_AUX}:{S_AUX+3}], s{S_KOFF} offen offset:{(k % 4) * 1024}")
    def mloads(x, p):
        A = base(p)
        x(f"s_mov_b32 s{S_MOFF}, {p * 65536}")
        for k in range(8):
            x(f"buffer_load_dwordx4 {ar(A + 32 + 4 * k, 4)}, v{vKM}, s[{S_AUX2}:{S_AUX2+3}], s{S_MOFF} offen offset:{k * 256}")
        for k in range(4):
            x(f"buffer_load_dwordx2 {ar(A + 96 + 4 * k, 2)}, v{vVM}, s[{S_AUX2}:{S_AUX2+3}], s{S_MOFF} offen offset:{k * 512}")
    def zeros(p):
        for k in range(4):
            for j in (2, 3): a(f"v_accvgpr_write_b32 a{base(p) + 96 + 4 * k + j}, 0")
    qconv(0); qconv(1); xloads(0)
    if dep: dep.block(a, 0)
    mloads(a, 0); zeros(0); qconv(2); qconv(3); zeros(1)
    for p in range(4):
        A = base(p); Q = QB + 32 * p
        a(f"s_waitcnt vmcnt({8 if p else 0})")
        skip = a.uid("Lam")
        def nxt():
            if p < 3:
                xloads(p + 1)
                if dep: dep.ready(a, p + 1, skip)
                mloads(a, p + 1)
                a.label(skip)
        for k in range(8):
            a(f"v_mfma_f32_32x32x16_bf16 {vr(S, 16)}, {ar(A + 4 * k, 4)}, {vr(Q + 4 * k, 4)}, {vr(S, 16) if k else 0}")
            a(f"v_mfma_f32_32x32x16_bf16 {vr(SM, 16)}, {ar(A + 32 + 4 * k, 4)}, {vr(Q + 4 * k, 4)}, {vr(SM, 16) if k else 0}")
        nxt()
        for i in range(16):
            a(f"v_cndmask_b32 v{S + i}, v{NEG}, v{S + i}, s[{S_MASK + 2*i}:{S_MASK + 2*i + 1}]")
        a(f"v_max3_f32 v{M}, v{S}, v{S+1}, v{S+2}")
        a(f"v_max3_f32 v{M+1}, v{S+3}, v{S+4}, v{S+5}")
        for i in range(6, 18, 4):
            a(f"v_max3_f32 v{M}, v{M}, v{S+i}, v{S+i+1}")
            a(f"v_max3_f32 v{M+1}, v{M+1}, v{S+i+2}, v{S+i+3}")
        a(f"v_max3_f32 v{M}, v{M}, v{S+18}, v{S+19}")
        a(f"v_max_f32 v{M}, v{M}, v{M+1}")
        a(f"v_mov_b32 v{M+1}, v{M}")
        a(f"v_permlane32_swap_b32 v{M+1}, v{M}")
        a(f"v_max_f32 v{M}, v{M}, v{M+1}")
        a(f"v_mul_f32 v{M}, s{S_CS}, v{M}")
        for i in range(20): a(f"v_fma_f32 v{S + i}, v{S + i}, s{S_CS}, -v{M}")
        for i in range(20): a(f"v_exp_f32 v{S + i}, v{S + i}")
        for i in range(10): a(f"v_cvt_pk_bf16_f32 v{Q + i}, v{S + 2*i}, v{S + 2*i + 1}")
        a(f"v_mov_b32 v{Q + 10}, 0")
        a(f"v_mov_b32 v{Q + 11}, 0")
        def pv(cc, d):
            a(f"v_mfma_f32_32x32x16_bf16 {vr(d, 16)}, {ar(A + 64 + 8 * cc, 4)}, {vr(Q, 4)}, 0")
            a(f"v_mfma_f32_32x32x16_bf16 {vr(d, 16)}, {ar(A + 68 + 8 * cc, 4)}, {vr(Q + 4, 4)}, {vr(d, 16)}")
            a(f"v_mfma_f32_32x32x16_bf16 {vr(d, 16)}, {ar(A + 96 + 4 * cc, 4)}, {vr(Q + 8, 4)}, {vr(d, 16)}")
        pv(0, O)
        for i in range(0, 8, 2): a(f"v_pk_add_f32 {vr(S + i, 2)}, {vr(S + i, 2)}, {vr(S + 8 + i, 2)}")
        pv(1, O + 16)
        a(f"v_pk_add_f32 {vr(S, 2)}, {vr(S, 2)}, {vr(S + 16, 2)}")
        a(f"v_pk_add_f32 {vr(S + 2, 2)}, {vr(S + 2, 2)}, {vr(S + 18, 2)}")
        a(f"v_pk_add_f32 {vr(S, 2)}, {vr(S, 2)}, {vr(S + 4, 2)}")
        a(f"v_pk_add_f32 {vr(S + 2, 2)}, {vr(S + 2, 2)}, {vr(S + 6, 2)}")
        a(f"v_pk_add_f32 {vr(S, 2)}, {vr(S, 2)}, {vr(S + 2, 2)}")
        a(f"v_add_f32 v{M}, v{S}, v{S+1}")
        a(f"v_mov_b32 v{M+1}, v{M}")
        a(f"v_permlane32_swap_b32 v{M+1}, v{M}")
        a(f"v_add_f32 v{M}, v{M}, v{M+1}")
        a(f"v_rcp_f32 v{M}, v{M}")
        pv(2, S); pv(3, Q + 16)
        for cc, d in enumerate((O, O + 16, S, Q + 16)):
            ob = OB + 8 * (cc & 1)
            if cc % 2 == 0: a(f"s_mov_b32 s{S_T0}, {p * 262144 + cc * 2048}")
            for i in range(0, 16, 2):
                a(f"v_pk_mul_f32 {vr(d + i, 2)}, {vr(d + i, 2)}, {vr(M, 2)} op_sel_hi:[1,0]")
            for i in range(8): a(f"v_cvt_pk_bf16_f32 v{ob + i}, v{d + 2*i}, v{d + 2*i + 1}")
            o = (cc & 1) * 2048
            a(f"buffer_store_dwordx4 {vr(ob, 4)}, v{vK}, s[{S_SRD_O}:{S_SRD_O+3}], s{S_T0} offen offset:{o}{sc}")
            a(f"buffer_store_dwordx4 {vr(ob + 4, 4)}, v{vK}, s[{S_SRD_O}:{S_SRD_O+3}], s{S_T0} offen offset:{o + 1024}{sc}")
        if dep:
            dep.done(a, p)
            if p < 3:
                late, back = a.uid("Lal"), a.uid("Lab")
                dep.ready(a, p + 1, late)
                a.label(back)
                cold.label(late)
                dep.block(cold, p + 1)
                mloads(cold, p + 1)
                cold("s_waitcnt vmcnt(0)")
                cold(f"s_branch {back}")
    return cold
```

```python
from asmlib import *
from layout import *
from gemm import GemmRegs
from gemm2 import *
from ln import gen_ln
import chain as ch
from chain import F_Q, F_KV, F_F1, F_F2, F_PROG, F_O, OOB
import hazard, sys
from v1 import srd_off, w_srd, BIG, SML, HRT

P_WQ, P_WK, P_WV, P_WO, P_W1, P_B1, P_W2, P_B2, P_X, P_OUT = 76, 78, 80, 82, 84, 86, 88, 90, 92, 94
S_DBG = 96
S_Y, S_NEXT, S_M, S_N, S_TYPE = 0, 1, 2, 3, 75
S_SPIN, S_PRG = 100, 101
V_L0, V_W0, V_TK, V_LD, V_P = 250, 251, 252, 253, 254
LDS_TK = 131072
T_KVS, T_F2, T_WO, T_KVB, T_F1, T_QA = range(6)
WSPIN = 1 << 16
DB = f"s[{S_DBG}:{S_DBG+3}]"
SC = " sc1"

def guard(a, out):
    a(f"s_add_u32 s{S_SPIN}, s{S_SPIN}, 1")
    a(f"s_cmp_ge_u32 s{S_SPIN}, {WSPIN}")
    a(f"s_cbranch_scc1 {out}")

def poll(a, soff, ssh, smask, starget, uid):
    lp, out = uid("Lpw"), uid("Lpo")
    a.label(lp)
    a(f"buffer_load_dword v{V_P}, off, {DB}, {soff} sc1")
    a("s_waitcnt vmcnt(0)")
    a(f"v_readfirstlane_b32 s{S_T0}, v{V_P}")
    a(f"s_lshr_b32 s{S_T0}, s{S_T0}, {ssh}")
    a(f"s_and_b32 s{S_T0}, s{S_T0}, {smask}")
    a(f"s_cmp_ge_u32 s{S_T0}, {starget}")
    a(f"s_cbranch_scc1 {out}")
    guard(a, out)
    a("s_sleep 4")
    a(f"s_branch {lp}")
    a.label(out)

def wait0(a, *args, barrier=True):
    sk = a.uid("Lw0")
    a(f"s_cmp_lg_u32 s{S_WAVE}, 0")
    a(f"s_cbranch_scc1 {sk}")
    poll(a, *args, a.uid)
    a.label(sk)
    if barrier: a("s_barrier")

def take_ticket(a):
    a(f"v_mov_b32 v{V_TK}, 1")
    a(f"s_lshl_b32 s{S_T0}, s{S_Y}, 2")
    a(f"s_add_u32 s{S_T0}, s{S_T0}, {F_Q}")
    a(f"buffer_atomic_add v{V_TK}, v{V_L0}, {DB}, s{S_T0} offen sc0 sc1")

def share_ticket(a, pre=None):
    sk = a.uid("Lst")
    a(f"s_cmp_lg_u32 s{S_WAVE}, 0")
    a(f"s_cbranch_scc1 {sk}")
    a(f"v_readfirstlane_b32 s{S_NEXT}, v{V_TK}")
    a(f"v_mov_b32 v{V_TK}, s{S_NEXT}")
    a(f"ds_write_b32 v{V_LD}, v{V_TK}")
    if pre: pre()
    a("s_waitcnt lgkmcnt(0)")
    a.label(sk)
    a("s_barrier")
    a(f"ds_read_b32 v{V_TK}, v{V_LD}")
    a("s_waitcnt lgkmcnt(0)")
    a(f"v_readfirstlane_b32 s{S_NEXT}, v{V_TK}")
    a(f"s_add_u32 s{S_NEXT}, s{S_NEXT}, 32")

def byte_flag(a, base, sidx, inc, so=40, sv=41):
    a(f"s_and_b32 s{so}, s{sidx}, 0xfc")
    a(f"s_add_u32 s{so}, s{so}, {base}")
    a(f"s_and_b32 s{sv}, s{sidx}, 3")
    a(f"s_lshl_b32 s{sv}, s{sv}, 3")
    if inc is not None: a(f"s_lshl_b32 s{sv}, {inc}, s{sv}")

def finish(a, name, base, sidx, inc):
    if base is not None:
        byte_flag(a, base, sidx, inc)
        a(f"v_mov_b32 v{V_P}, s41")
        a("s_waitcnt vmcnt(0)")
        a("s_barrier")
        a(f"buffer_atomic_add v{V_P}, v{V_L0}, {DB}, s40 offen sc1")
    a(f"s_branch {name}_task")

class AttnDep:
    def __init__(s, a, seg, late): s.a, s.seg, s.late = a, seg, late
    def ready(s, a, p, lab):
        a(f"s_add_u32 s{S_T0}, s{s.seg}, {p}")
        a(f"s_cmp_le_u32 s{S_PRG}, s{S_T0}")
        a(f"s_cbranch_scc1 {lab}")
    def block(s, x, p):
        lp, out = s.a.uid("Lbw"), s.a.uid("Lbo")
        x(f"s_lshl_b32 s{S_T1}, s{S_Y}, 3")
        x(f"s_add_u32 s{S_T1}, s{S_T1}, {F_PROG}")
        x.label(lp)
        x(f"buffer_load_dwordx2 v[{V_P}:{V_P+1}], off, {DB}, s{S_T1} sc1")
        x("s_waitcnt vmcnt(0)")
        x(f"v_readfirstlane_b32 s{S_PRG}, v{V_P}")
        x(f"v_readfirstlane_b32 s{S_T0}, v{V_P+1}")
        x(f"s_cmp_ge_u32 s{S_T0}, 32")
        x(f"s_cselect_b32 s{S_PRG}, 64, s{S_PRG}")
        x(f"s_add_u32 s{S_T0}, s{s.seg}, {p}")
        x(f"s_cmp_gt_u32 s{S_PRG}, s{S_T0}")
        x(f"s_cbranch_scc1 {out}")
        guard(x, out)
        x("s_sleep 2")
        x(f"s_branch {lp}")
        x.label(out)
        x(f"s_add_u32 s{S_T0}, s{s.seg}, {p + 1}")
        x(f"s_max_u32 s{S_PRG}, s{S_PRG}, s{S_T0}")
    def done(s, a, p):
        sk = a.uid("Lad")
        if p < 3:
            a(f"s_cmp_lt_u32 s{s.seg}, {s.late}")
            a(f"s_cbranch_scc1 {sk}")
            a(f"v_mov_b32 v{V_P}, {1 << (8 * p):#x}")
        else:
            a(f"s_cmp_lt_u32 s{s.seg}, {s.late}")
            a(f"s_cselect_b32 s{S_T0}, 0x01010101, 0x01000000") if False else None
            a(f"s_cselect_b32 s{S_T0}, 0x00010101, 0")
            a(f"s_add_u32 s{S_T0}, s{S_T0}, 0x01000000")
            a(f"v_mov_b32 v{V_P}, s{S_T0}")
        a(f"s_add_u32 s{S_T0}, s{s.seg}, {F_O}")
        a("s_waitcnt vmcnt(0)")
        a(f"buffer_atomic_add v{V_P}, v{V_W0}, {DB}, s{S_T0} offen sc1")
        a.label(sk)

def stamp_task(a, k):
    a(f"s_memrealtime s[{60 + 2 * k}:{61 + 2 * k}]") if False else None

def worker(a, name, phases, o):
    cB, cBV = shape(*BIG, True), shape(*BIG, False)
    cS, cSV = shape(*SML, True), shape(*SML, False)
    rB, rS = GemmRegs(cB), GemmRegs(cS)
    tr = o.get('trace')
    a(f"s_load_dwordx8 s[{P_WQ}:{P_WQ+7}], s[0:1], {KA['Wq']}")
    a(f"s_load_dwordx8 s[{P_W1}:{P_W1+7}], s[0:1], {KA['w1']}")
    a(f"s_load_dwordx2 s[{P_X}:{P_X+1}], s[0:1], {KA['x']}")
    a(f"s_load_dwordx2 s[{P_OUT}:{P_OUT+1}], s[0:1], {KA['out']}")
    srd(a, S_DBG, 6, 256)
    wave_setup(a, rB)
    a(f"v_mov_b32 v{V_W0}, {OOB:#x}")
    a(f"v_writelane_b32 v{V_W0}, 0, 0")
    a(f"v_mov_b32 v{V_L0}, {OOB:#x}")
    a(f"v_cmp_eq_u32 vcc, 0, v0")
    a(f"v_cndmask_b32 v{V_L0}, v{V_L0}, 0, vcc")
    a(f"v_mov_b32 v{V_LD}, {LDS_TK}")
    a(f"s_mov_b32 s{S_SPIN}, 0")
    a("s_waitcnt lgkmcnt(0)")
    a(f"s_mov_b32 s{S_Y}, s60")
    a(f"s_mov_b32 s{S_NEXT}, s61")
    a.label(f"{name}_task")
    if tr:
        a("s_memrealtime s[40:41]")
        srd(a, 8, 4, 0x100000, off_imm=STAMPS)
        a(f"s_lshl_b32 s42, s{S_Y}, 8")
        a(f"s_add_u32 s42, s42, s{S_NEXT}")
        a("s_lshl_b32 s42, s42, 5")
        a("s_waitcnt lgkmcnt(0)")
        a(f"v_mov_b32 v{V_P}, s40")
        a(f"v_mov_b32 v{V_P+1}, s{tr}")
        a(f"buffer_store_dwordx2 v[{V_P}:{V_P+1}], v{V_L0}, s[8:11], s42 offen")
        a(f"s_mov_b32 s{tr}, s{S_NEXT}")
    b = 0
    for k, ph in enumerate(phases):
        a(f"s_sub_u32 s40, s{S_NEXT}, {b}")
        a(f"s_cmp_lt_u32 s40, {ph[1]}")
        a(f"s_cbranch_scc1 {name}_ph{k}")
        b += ph[1]
    a(f"s_branch {name}_end")
    for k, ph in enumerate(phases):
        t = ph[0]
        a.label(f"{name}_ph{k}")
        a(f"s_mov_b32 s{S_TYPE}, {t}")
        sh = {T_KVS: 4, T_KVB: 3, T_QA: 2, T_WO: 1}.get(t)
        if sh is not None:
            a(f"s_lshr_b32 s{S_M}, s40, {sh}")
            a(f"s_add_u32 s{S_M}, s{S_M}, {ph[2]}")
            a(f"s_and_b32 s40, s40, {(1 << sh) - 1}")
            a(f"s_lshl_b32 s{S_N}, s{S_Y}, {sh}")
            a(f"s_add_u32 s{S_N}, s{S_N}, s40")
        elif t == T_F1:
            a(f"s_add_u32 s40, s40, {ph[2]}")
            a("s_cmp_ge_u32 s40, 14")
            a("s_cselect_b32 s41, 14, 0")
            a(f"s_cselect_b32 s{S_M}, 1, 0")
            a(f"s_sub_u32 s{S_N}, s40, s41")
            a(f"s_lshl_b32 s41, s{S_Y}, 1")
            a(f"s_add_u32 s{S_M}, s{S_M}, s41")
        elif t == T_F2:
            a(f"s_add_u32 s40, s40, {ph[2]}")
            a(f"s_and_b32 s{S_N}, s40, 7")
            a(f"s_lshr_b32 s{S_M}, s40, 3")
            a(f"s_lshl_b32 s41, s{S_Y}, 2")
            a(f"s_add_u32 s{S_M}, s{S_M}, s41")
        a(f"s_branch {name}_h{t}")

    def xn_srd(rows_sh, nrt):
        a(f"s_lshl_b32 s40, s{S_M}, {rows_sh}")
        if XN: a(f"s_add_u32 s40, s40, {XN}")
        srd_off(a, 8, 4, 40, nbytes=nrt * 65536)
    def kv_handler(t, c, r, nrt, lab_t, lab_f):
        lg = nrt.bit_length() - 1
        half = 4096 // c.BN
        a.label(f"{name}_h{t}")
        take_ticket(a)
        static_setup(a, c, r)
        a(f"s_mov_b32 s{S_RTS}, 65536"); a(f"s_mov_b32 s{S_LDB}, 8192"); a(f"s_mov_b32 s{S_NIT}, {1024 // (c.BK * c.NS) - 1}")
        task_setup(a, c, r)
        xn_srd(16 + lg, nrt)
        a(f"s_cmp_ge_u32 s{S_N}, {half}")
        a(f"s_cselect_b32 s42, s{P_WV}, s{P_WK}")
        a(f"s_cselect_b32 s43, s{P_WV+1}, s{P_WK+1}")
        a(f"s_cselect_b32 s44, {VX - KX}, 0")
        a(f"s_and_b32 s45, s{S_N}, {half - 1}")
        a(f"s_lshl_b32 s40, s45, {6 + lg}")
        w_srd(a, 42, 1024 * 8192, 40)
        gemm_prologue(a, c, r)
        a(f"s_lshl_b32 s40, s{S_M}, {18 + lg}")
        a(f"s_add_u32 s40, s40, s44")
        a(f"s_lshl_b32 s45, s45, {11 + lg}")
        a(f"s_add_u32 s40, s40, s45")
        a(f"s_add_u32 s40, s40, {KX}")
        srd_off(a, 16, 4, 40, nbytes=nrt * 262144)
        acc_zero(a, c)
        a(f"s_cmp_ge_u32 s{S_N}, {half}")
        a(f"s_cbranch_scc1 {lab_f}")
        a(f"s_branch {lab_t}")
    kv_handler(T_KVS, cS, rS, 4, f"{name}_lst", f"{name}_lsf")
    kv_handler(T_KVB, cB, rB, 8, f"{name}_lbt", f"{name}_lbf")
    a.label(f"{name}_h{T_F1}")
    take_ticket(a)
    static_setup(a, cB, rB)
    a(f"s_mov_b32 s{S_RTS}, 65536"); a(f"s_mov_b32 s{S_LDB}, 7168"); a(f"s_mov_b32 s{S_NIT}, 7")
    task_setup(a, cB, rB)
    xn_srd(19, 8)
    a(f"s_lshl_b32 s40, s{S_N}, 9")
    w_srd(a, P_W1, 1024 * 7168, 40)
    srd(a, S_AUX, P_B1, 7168)
    bias_load(a, cB, rB, S_AUX, 40)
    gemm_prologue(a, cB, rB)
    a(f"s_mul_i32 s40, s{S_M}, {8 * HRT}")
    a(f"s_lshl_b32 s41, s{S_N}, 14")
    a(f"s_add_u32 s40, s40, s41")
    a(f"s_add_u32 s40, s40, {HH}")
    srd_off(a, 16, 4, 40, nbytes=8 * HRT)
    a(f"s_waitcnt vmcnt({n_prologue(cB)})")
    acc_bias(a, cB, rB)
    a(f"s_branch {name}_lbt")
    a.label(f"{name}_h{T_QA}")
    take_ticket(a)
    static_setup(a, cB, rB)
    a(f"s_mov_b32 s{S_RTS}, 65536"); a(f"s_mov_b32 s{S_LDB}, 8192"); a(f"s_mov_b32 s{S_NIT}, 7")
    task_setup(a, cB, rB)
    xn_srd(19, 8)
    a(f"s_lshl_b32 s40, s{S_N}, 9")
    w_srd(a, P_WQ, 1024 * 8192, 40)
    gemm_prologue(a, cB, rB)
    acc_zero(a, cB)
    a(f"s_lshl_b32 s40, s{S_M}, 21")
    a(f"s_lshl_b32 s41, s{S_N}, 14")
    a("s_add_u32 s40, s40, s41")
    a(f"s_add_u32 s41, s40, {OO}")
    srd_off(a, 16, 4, 41, nbytes=8 * 262144)
    a(f"s_add_u32 s41, s40, {KX}")
    srd_off(a, S_AUX, 4, 41, nbytes=VX - KX + 8 * 262144)
    a(f"s_lshl_b32 s40, s{S_M}, 19")
    a(f"s_lshl_b32 s41, s{S_N}, 12")
    a("s_add_u32 s40, s40, s41")
    a(f"s_add_u32 s41, s40, {KM}")
    srd_off(a, S_AUX2, 4, 41, nbytes=VM - KM + 8 * 65536)
    a.label(f"{name}_lbt")
    gemm_loop(a, cB, rB)
    def kvdep():
        sk = a.uid("Lkd")
        a(f"s_cmp_lg_u32 s{S_TYPE}, {T_QA}")
        a(f"s_cbranch_scc1 {sk}")
        a(f"s_add_u32 s42, s{S_M}, 2")
        byte_flag(a, F_KV, 42, None)
        a(f"s_lshl_b32 s42, s{S_M}, 4")
        a(f"s_cmp_lt_u32 s{S_M}, 2")
        a(f"s_cselect_b32 s40, {F_KV}, s40")
        a(f"s_cselect_b32 s41, s42, s41")
        a(f"s_cselect_b32 s42, 0xffff, 0xff") if False else None
        a(f"s_cselect_b32 s43, 0x4040, 64")
        a(f"s_bfm_b32 s42, 8, 0")
        a(f"s_cselect_b32 s42, 0xffff, s42")
        poll(a, "s40", "s41", "s42", "s43", a.uid)
        a.label(sk)
    share_ticket(a, kvdep)
    a(f"s_cmp_eq_u32 s{S_TYPE}, {T_F1}")
    a(f"s_cbranch_scc1 {name}_ef1")
    a(f"s_cmp_eq_u32 s{S_TYPE}, {T_QA}")
    a(f"s_cbranch_scc1 {name}_eqa")
    a(f"s_branch {name}_ekvb")
    a.label(f"{name}_lbf")
    gemm_loop(a, cBV, rB)
    share_ticket(a)
    a.label(f"{name}_ekvb")
    epi_frag(a, cB, rB, 262144, None, SC)
    a(f"s_add_u32 s42, s{S_M}, 2")
    finish(a, name, F_KV, 42, 2)
    a.label(f"{name}_ef1")
    epi_frag(a, cB, rB, HRT, 'gelu', SC)
    finish(a, name, F_F1, S_M, 1)
    a.label(f"{name}_eqa")
    attn_masks(a, rB)
    a(f"s_and_b32 s{S_T0}, s{S_WAVE}, 1")
    a(f"s_lshl_b32 s{S_T0}, s{S_T0}, 2")
    a(f"s_lshl_b32 s{S_M}, s{S_M}, 3")
    a(f"s_add_u32 s{S_M}, s{S_M}, s{S_T0}")
    cold = epi_attn(a, cB, rB, SC, AttnDep(a, S_M, o.get('late', 64)))
    finish(a, name, None, None, None)
    a.lines += cold.lines
    a.label(f"{name}_h{T_F2}")
    take_ticket(a)
    static_setup(a, cS, rS)
    a(f"s_mov_b32 s{S_RTS}, {HRT}"); a(f"s_mov_b32 s{S_LDB}, 2048"); a(f"s_mov_b32 s{S_NIT}, {3584 // (cS.BK * cS.NS) - 1}")
    task_setup(a, cS, rS)
    a(f"s_mul_i32 s40, s{S_M}, {4 * HRT}")
    a(f"s_add_u32 s40, s40, {HH}")
    srd_off(a, 8, 4, 40, nbytes=4 * HRT)
    a(f"s_lshl_b32 s44, s{S_N}, 8")
    w_srd(a, P_W2, 3584 * 2048, 44)
    srd(a, S_AUX, P_B2, 2048)
    a(f"s_lshl_b32 s40, s{S_M}, 18")
    a(f"s_lshl_b32 s41, s{S_N}, 13")
    a(f"s_add_u32 s40, s40, s41")
    a(f"s_add_u32 s40, s40, {GG}")
    srd_off(a, 16, 4, 40, nbytes=4 * 65536)
    a(f"s_lshr_b32 s42, s{S_M}, 1")
    byte_flag(a, F_F1, 42, None)
    wait0(a, "s40", "s41", "0xff", "14")
    bias_load(a, cS, rS, S_AUX, 44)
    gemm_prologue(a, cS, rS)
    a(f"s_waitcnt vmcnt({n_prologue(cS)})")
    acc_bias(a, cS, rS)
    a(f"s_branch {name}_lst")
    a.label(f"{name}_h{T_WO}")
    take_ticket(a)
    static_setup(a, cS, rS)
    a(f"s_mov_b32 s{S_RTS}, 262144"); a(f"s_mov_b32 s{S_LDB}, 2048"); a(f"s_mov_b32 s{S_NIT}, {4096 // (cS.BK * cS.NS) - 1}")
    task_setup(a, cS, rS)
    a(f"s_lshl_b32 s40, s{S_M}, 20")
    a(f"s_add_u32 s40, s40, {OO}")
    srd_off(a, 8, 4, 40, nbytes=4 * 262144)
    a(f"s_lshl_b32 s40, s{S_N}, 8")
    w_srd(a, P_WO, 4096 * 2048, 40)
    a(f"s_lshl_b32 s41, s{S_M}, 18")
    a("s_add_u32 s40, s40, s41")
    a(f"s_sub_u32 s42, {2048 * 2048}, s40")
    srd_off(a, 16, P_OUT, 40, nbytes_s=42)
    srd_off(a, S_AUX2, P_X, 40, nbytes_s=42)
    a(f"s_lshl_b32 s42, s{S_N}, 13")
    a("s_add_u32 s41, s41, s42")
    a(f"s_add_u32 s41, s41, {GG}")
    srd_off(a, S_AUX, 4, 41, nbytes=4 * 65536)
    a(f"s_lshl_b32 s40, s{S_M}, 2")
    a(f"s_add_u32 s40, s40, {F_O}")
    wait0(a, "s40", "0", "-1", "0x20202020")
    gemm_prologue(a, cS, rS)
    acc_zero(a, cS)
    a.label(f"{name}_lst")
    gemm_loop(a, cS, rS)
    def gdep():
        sk = a.uid("Lgd")
        a(f"s_cmp_lg_u32 s{S_TYPE}, {T_WO}")
        a(f"s_cbranch_scc1 {sk}")
        byte_flag(a, F_F2, S_M, None)
        poll(a, "s40", "s41", "0xff", "8", a.uid)
        a.label(sk)
    share_ticket(a, gdep)
    a(f"s_cmp_eq_u32 s{S_TYPE}, {T_F2}")
    a(f"s_cbranch_scc1 {name}_ef2")
    a(f"s_cmp_eq_u32 s{S_TYPE}, {T_WO}")
    a(f"s_cbranch_scc1 {name}_ewo")
    a(f"s_branch {name}_ekvs")
    a.label(f"{name}_lsf")
    gemm_loop(a, cSV, rS)
    share_ticket(a)
    a.label(f"{name}_ekvs")
    epi_frag(a, cS, rS, 262144, None, SC)
    finish(a, name, F_KV, S_M, 1)
    a.label(f"{name}_ef2")
    epi_frag(a, cS, rS, 65536, 'silu', SC)
    finish(a, name, F_F2, S_M, 1)
    a.label(f"{name}_ewo")
    epi_final(a, cS, rS, rS.fX[0][0], depth=4)
    finish(a, name, None, None, None)

PH0 = [(T_KVS, 64, 0), (T_KVB, 32, 2), (T_F1, 28, 0), (T_KVB, 16, 6), (T_QA, 12, 0), (T_F2, 32, 0), (T_QA, 4, 3), (T_WO, 12, 0),
       (T_QA, 4, 4), (T_WO, 4, 6), (T_QA, 4, 5), (T_WO, 4, 8), (T_QA, 8, 6), (T_WO, 12, 10)]

def gen_main(a, name, o):
    r = ch.CR()
    mask = o.get('mask', 0x0f)
    o = dict(o, flags=True)
    kernel_header(a, name)
    ch.roles(a, name, f"{name}_end", mask)
    a(f"s_cbranch_scc0 {name}_wk")
    ch.chain_setup(a, r, 33)
    ch.chain_weights(a, r)
    a("s_barrier")
    if o.get('trace'):
        a("s_memrealtime s[96:97]")
        a("s_waitcnt lgkmcnt(0)")
    a("s_cmp_eq_u32 s3, 2")
    a(f"s_cbranch_scc1 {name}_slow")
    ch.chain_loop(a, r, name + "_f", True, False, o)
    if o.get('trace'):
        a("s_memrealtime s[98:99]")
        srd(a, 8, 4, 0x100000, off_imm=STAMPS + 0x10000)
        a("s_lshl_b32 s42, s25, 5")
        a("s_add_u32 s42, s42, s26")
        a("s_lshl_b32 s42, s42, 3")
        a("s_waitcnt lgkmcnt(0)")
        a("v_mov_b32 v2, s96")
        a("v_mov_b32 v3, s98")
        a("buffer_store_dwordx2 v[2:3], off, s[8:11], s42")
    a("s_endpgm")
    a.label(f"{name}_slow")
    ch.chain_loop(a, r, name + "_s", False, False, o)
    a("s_endpgm")
    a.label(f"{name}_wk")
    a("s_lshl_b32 s39, 1, s37")
    a("s_sub_u32 s39, s39, 1")
    a(f"s_and_b32 s39, s39, {0xff & ~mask}")
    a("s_bcnt1_i32_b32 s60, s39")
    a("s_sub_u32 s35, s35, 128")
    a("s_lshr_b32 s39, s35, 5")
    a("s_and_b32 s35, s35, 31")
    a("s_cmp_eq_u32 s3, 1")
    a("s_cselect_b32 s60, s60, s39")
    a("s_cselect_b32 s61, s38, s35")
    worker(a, name, o.get('phases', PH0), o)
    a.label(f"{name}_end")
    a("s_endpgm")
    return dict(vgpr=512, accum=256, lds=131072 + 256, grid=256, block=256)

def build(path, variants):
    a = Asm(); body = Asm(); ks = []
    ks.append(("ln_kernel", gen_ln(body, "ln_kernel")))
    for n, o in variants.items():
        ks.append((n + "_kernel", gen_main(body, n + "_kernel", o)))
    lines, n = hazard.fix(body.lines, "-v" in sys.argv)
    print("nops inserted", n)
    hdr = open("recurrent_scan__memory_aug_recurrent_mem_tr__dense_activation_gelu__prompt.s.ref").read().split("\n")
    a.lines += [l for l in hdr if l.startswith(";") and "@launch" not in l and "Override" not in l and "grid=ceil" not in l]
    for n, k in ks:
        a.lines.append(f"; @launch kernel={n} grid=({k['grid']},1,1) block=({k['block']},1,1) lds={k['lds']}")
    a.lines.append('.amdgcn_target "amdgcn-amd-amdhsa--gfx950"')
    a.lines += [l[3:] if l.startswith("    ") else l for l in lines]
    for n, k in ks: kernel_desc(a, n, k['vgpr'], k['accum'])
    open(path, "w").write(a.text())

if __name__ == "__main__":
    V = eval(open(sys.argv[2]).read()) if len(sys.argv) > 2 and not sys.argv[2].startswith("-") else {'main': {'mask': 15}}
    build(sys.argv[1], V)
```
